```python
import torch

def _softmax(x, axis=-1):
    return torch.softmax(x, dim=axis)
def _gelu(x):
    return torch.nn.functional.gelu(x, approximate="tanh")
def _silu(x):
    return torch.nn.functional.silu(x)
def _sigmoid(x):
    return torch.sigmoid(x)
def _layernorm(x, axis=-1, eps=1e-5):
    m = x.mean(dim=axis, keepdim=True)
    v = x.var(dim=axis, keepdim=True, unbiased=False)
    return (x - m) / torch.sqrt(v + eps)
def _scatter_add(tgt, idx, src, axis=0):
    return tgt.clone().index_add_(axis, idx, src)
def _segment_sum(src, seg, n):
    out = torch.zeros((n,) + src.shape[1:], dtype=src.dtype)
    return out.index_add_(0, seg, src)
def _pad(x, pw):
    flat = tuple(v for pair in reversed(pw) for v in pair)
    return torch.nn.functional.pad(x, flat)

kernel_name = 'interleave_layers__gqa_block_cached__gqa_block_cached__decode'

def setup_inputs():

    _w = (lambda a: (lambda t: t.to(torch.bfloat16) if t.is_floating_point() else t)(torch.as_tensor(a)))
    def _A_setup():
        B, Sq, D = 8, 1, 448
        Hq, Hkv, Sk, Dh = 16, 8, 4096, 256
        assert Hq % Hkv == 0, (Hq, Hkv)
        return {
            "x": _w((lambda *s: torch.randn(*s, dtype=torch.bfloat16) * 0.1)(B, Sq, D)),
            "k_cache": _w((lambda *s: torch.randn(*s, dtype=torch.bfloat16) * 0.8)(B, Hkv, Sk, Dh)),
            "v_cache": _w((lambda *s: torch.randn(*s, dtype=torch.bfloat16) * 3.2)(B, Hkv, Sk, Dh)),
            "wq": _w((lambda *s: torch.randn(*s, dtype=torch.bfloat16) * 0.8)(D, Hq * Dh) * (D ** -0.5)),
            "wo": _w((lambda *s: torch.randn(*s, dtype=torch.bfloat16) * 3.2)(Hq * Dh, D) * ((Hq * Dh) ** -0.5)),
        }
    _A_in = _A_setup()

    def _B_setup():
        B, Sq, D = 8, 1, 448
        Hq, Hkv, Sk, Dh = 16, 8, 4096, 256
        assert Hq % Hkv == 0, (Hq, Hkv)
        return {
            "x": _w((lambda *s: torch.randn(*s, dtype=torch.bfloat16) * 0.1)(B, Sq, D)),
            "k_cache": _w((lambda *s: torch.randn(*s, dtype=torch.bfloat16) * 1.6)(B, Hkv, Sk, Dh)),
            "v_cache": _w((lambda *s: torch.randn(*s, dtype=torch.bfloat16) * 1.6)(B, Hkv, Sk, Dh)),
            "wq": _w((lambda *s: torch.randn(*s, dtype=torch.bfloat16) * 1.6)(D, Hq * Dh) * (D ** -0.5)),
            "wo": _w((lambda *s: torch.randn(*s, dtype=torch.bfloat16) * 1.6)(Hq * Dh, D) * ((Hq * Dh) ** -0.5)),
        }
    _B_in = _B_setup()

    return {
        "A_x": _A_in["x"],
        "A_k_cache": _A_in["k_cache"],
        "A_v_cache": _A_in["v_cache"],
        "A_wq": _A_in["wq"],
        "A_wo": _A_in["wo"],
        "B_x": _B_in["x"],
        "B_k_cache": _B_in["k_cache"],
        "B_v_cache": _B_in["v_cache"],
        "B_wq": _B_in["wq"],
        "B_wo": _B_in["wo"],
    }

def reference(A_x, A_k_cache, A_v_cache, A_wq, A_wo, B_x, B_k_cache, B_v_cache, B_wq, B_wo):
    def _A_ref(x, k_cache, v_cache, wq, wo):
        B, Sq, D = x.shape
        Hq, Dh = 16, 256
        Hkv = k_cache.shape[1]
        rep = Hq // Hkv
        q = (lambda x, *d: x.permute(*d))((x @ wq).reshape(B, Sq, Hq, Dh), 0, 2, 1, 3)
        k = (lambda x, n, axis: torch.repeat_interleave(x, n, dim=axis))(k_cache, rep, axis=1)
        v = (lambda x, n, axis: torch.repeat_interleave(x, n, dim=axis))(v_cache, rep, axis=1)
        scores = torch.einsum("bhqd,bhkd->bhqk", q, k) * (Dh ** -0.5)
        p = _softmax(scores, axis=-1)
        o = torch.einsum("bhqk,bhkd->bhqd", p, v)
        return (lambda x, *d: x.permute(*d))(o, 0, 2, 1, 3).reshape(B, Sq, Hq * Dh) @ wo

    def _B_ref(x, k_cache, v_cache, wq, wo):
        B, Sq, D = x.shape
        Hq, Dh = 16, 256
        Hkv = k_cache.shape[1]
        rep = Hq // Hkv
        q = (lambda x, *d: x.permute(*d))((x @ wq).reshape(B, Sq, Hq, Dh), 0, 2, 1, 3)
        k = (lambda x, n, axis: torch.repeat_interleave(x, n, dim=axis))(k_cache, rep, axis=1)
        v = (lambda x, n, axis: torch.repeat_interleave(x, n, dim=axis))(v_cache, rep, axis=1)
        scores = torch.einsum("bhqd,bhkd->bhqk", q, k) * (Dh ** -0.5)
        p = _softmax(scores, axis=-1)
        o = torch.einsum("bhqk,bhkd->bhqd", p, v)
        return (lambda x, *d: x.permute(*d))(o, 0, 2, 1, 3).reshape(B, Sq, Hq * Dh) @ wo

    x = A_x
    x = x + _A_ref(_layernorm(x, axis=-1), A_k_cache, A_v_cache, A_wq, A_wo)
    x = x + _B_ref(_layernorm(x, axis=-1), B_k_cache, B_v_cache, B_wq, B_wo)
    x = x + _A_ref(_layernorm(x, axis=-1), A_k_cache, A_v_cache, A_wq, A_wo)
    x = x + _B_ref(_layernorm(x, axis=-1), B_k_cache, B_v_cache, B_wq, B_wo)
    return x
```

```python
import re

TRANS = ('v_exp_f32','v_log_f32','v_rcp_f32','v_rsq_f32','v_sqrt_f32','v_sin_f32','v_cos_f32')

def regs_of(tok):
    tok = tok.strip()
    m = re.fullmatch(r'([vas])\[(\d+):(\d+)\]', tok)
    if m:
        return {(m.group(1), i) for i in range(int(m.group(2)), int(m.group(3))+1)}
    m = re.fullmatch(r'-?\|?([vas])(\d+)\|?', tok)
    if m:
        return {(m.group(1), int(m.group(2)))}
    if tok == 'vcc': return {('s','vcc')}
    if tok in ('vcc_lo','vcc_hi'): return {('s','vcc')}
    if tok == 'exec': return {('s','exec')}
    if tok == 'm0': return {('s','m0')}
    return set()

class Ins:
    def __init__(self, text):
        self.text = text
        t = text.split(';')[0].strip()
        self.label = None
        self.op = None
        self.defs = set(); self.uses = set()
        self.kind = 'other'
        self.dpp = False
        if t.endswith(':'):
            self.label = t[:-1]; self.kind = 'label'; return
        if not t or t.startswith('.'):
            self.kind = 'dir'; return
        parts = t.split(None, 1)
        self.op = op = parts[0]
        rest = parts[1] if len(parts) > 1 else ''
        ops = [o.strip() for o in rest.split(',')] if rest else []
        mods = ''
        if ops:
            last = ops[-1].split(None, 1)
            if len(last) > 1:
                ops[-1] = last[0]; mods = last[1]
        self.ops = ops; self.mods = mods
        R = [regs_of(o) for o in ops]
        if op.startswith('v_mfma'):
            self.kind = 'mfma'
            self.D = R[0]; self.A = R[1]; self.B = R[2]; self.C = R[3]
            self.Dtok = ops[0]; self.Ctok = ops[3]
            self.defs = R[0]; self.uses = R[1] | R[2] | R[3]
        elif op.startswith('v_'):
            self.kind = 'valu'
            self.dpp = ('row_' in mods) or ('quad_perm' in mods) or ('wave_' in mods) or op.endswith('_dpp')
            if op.startswith('v_permlane') and 'swap' in op:
                self.defs = R[0] | R[1]; self.uses = R[0] | R[1]; self.kind = 'valu'; self.perml = True
            elif op.startswith('v_cmp'):
                self.defs = R[0]; self.uses = set().union(*R[1:]) if len(R) > 1 else set()
            elif op.startswith('v_readfirstlane') or op.startswith('v_readlane'):
                self.defs = R[0]; self.uses = set().union(*R[1:])
            elif op.startswith('v_writelane'):
                self.defs = R[0]; self.uses = set().union(*R)
            elif op.startswith('v_add_co') or op.startswith('v_sub_co') or op.startswith('v_addc_co'):
                self.defs = R[0] | R[1]; self.uses = set().union(*R[2:])
            else:
                self.defs = R[0]; self.uses = set().union(*R[1:]) if len(R) > 1 else set()
                if op.startswith('v_fmac') or op.startswith('v_mac') or op.startswith('v_dot2c') or self.dpp:
                    self.uses |= R[0]
                if op.startswith('v_cndmask') and len(ops) == 3:
                    self.uses |= {('s','vcc')}
        elif op.startswith('ds_'):
            self.kind = 'ds'
            if op.startswith('ds_read') :
                self.defs = R[0]; self.uses = R[1]
            else:
                self.uses = set().union(*R)
                self.wide = ('b128' in op or 'b96' in op)
                self.data = set().union(*R[1:])
        elif op.startswith('buffer_') or op.startswith('global_'):
            self.kind = 'vmem'
            if 'load' in op:
                self.defs = R[0]; self.uses = set().union(*R[1:])
            else:
                self.uses = set().union(*R)
                self.wide = ('x4' in op or 'x3' in op)
                self.data = R[0] if op.startswith('buffer_') else R[1]
        elif op.startswith('s_'):
            self.kind = 'salu'
            if op == 's_nop':
                self.kind = 'nop'; self.n = int(ops[0], 0) + 1
            elif op.startswith('s_cbranch') or op == 's_branch':
                self.kind = 'branch'; self.target = ops[0]
                if 'vcc' in op: self.uses = {('s','vcc')}
                if 'exec' in op: self.uses = {('s','exec')}
            elif op in ('s_waitcnt','s_barrier','s_endpgm','s_setprio','s_sleep'):
                pass
            elif op.startswith('s_cmp') or op.startswith('s_bitcmp'):
                self.uses = set().union(*R) if R else set()
            elif op.startswith('s_load') or op.startswith('s_memrealtime') or op.startswith('s_memtime'):
                self.kind = 'smem'; self.defs = R[0]; self.uses = set().union(*R[1:]) if len(R) > 1 else set()
            else:
                self.defs = R[0] if R else set(); self.uses = set().union(*R[1:]) if len(R) > 1 else set()
                if 'saveexec' in op: self.defs |= {('s','exec')}
    def states(self):
        if self.kind in ('label','dir'): return 0
        if self.kind == 'nop': return self.n
        return 1

def vg(s):
    return {r for r in s if r[0] in 'va'}
def sg(s):
    return {r for r in s if r[0] == 's'}

def need(prev, cur):
    n = 0
    pk, ck = prev.kind, cur.kind
    if pk == 'valu':
        pv = vg(prev.defs); ps = sg(prev.defs)
        if ck == 'mfma' and pv & cur.uses: n = max(n, 2)
        if ck == 'valu':
            if pv & cur.uses:
                if cur.op.startswith('v_readfirstlane') or cur.op.startswith('v_readlane'): n = max(n, 1)
                if cur.op.startswith('v_permlane'): n = max(n, 2)
                if cur.dpp: n = max(n, 2)
                if prev.op.replace('_e32','').replace('_e64','') in TRANS: n = max(n, 1)
            if ps & cur.uses:
                n = max(n, 2)
                if cur.op.startswith('v_readlane') or cur.op.startswith('v_writelane'): n = max(n, 4)
        if ck == 'vmem' and ps & cur.uses: n = max(n, 5)
        if ck in ('vmem','ds') and prev.op.replace('_e32','').replace('_e64','') in TRANS and pv & cur.uses: n = max(n, 1)
    if pk == 'mfma':
        D = prev.D
        if ck == 'mfma':
            if D & (cur.A | cur.B): n = max(n, 8)
            if D & cur.C:
                if prev.Dtok == cur.Ctok: pass
                else: n = max(n, 6)
            if (D & cur.D) and not (prev.Dtok == cur.Ctok and cur.Dtok == cur.Ctok): n = max(n, 8)
        elif ck in ('valu','vmem','ds'):
            if D & (cur.uses | cur.defs): n = max(n, 8)
            if ck == 'valu' and (prev.C & cur.defs): n = max(n, 3)
    if pk in ('vmem','ds') and getattr(prev, 'wide', False):
        if prev.data & cur.defs:
            n = max(n, 2 if ck == 'valu' else 1)
    return n

WINDOW = 10

def fix_linear(ins):
    out = []
    for I in ins:
        if I.kind in ('label','dir'):
            out.append(I); continue
        pad = 0; dist = 0
        for P in reversed(out):
            if P.kind in ('label','dir'): continue
            nd = need(P, I)
            if nd > dist: pad = max(pad, nd - dist)
            dist += P.states()
            if dist >= WINDOW: break
        if pad > 0:
            out.append(Ins('s_nop %d' % (pad-1)))
        out.append(I)
    return out

def check_edges(ins):
    lab = {I.label: i for i, I in enumerate(ins) if I.kind == 'label'}
    res = {}
    for i, B in enumerate(ins):
        if B.kind != 'branch' or B.target not in lab: continue
        hist = []
        d = 0
        for P in reversed(ins[:i+1]):
            if P.kind in ('label','dir'): continue
            hist.append(P); d += P.states()
            if d >= WINDOW: break
        fd = 0
        for F in ins[lab[B.target]+1:]:
            if F.kind in ('label','dir'): continue
            dist = fd
            for P in hist:
                nd = need(P, F)
                if nd > dist:
                    res[lab[B.target]] = max(res.get(lab[B.target], 0), nd - dist)
                dist += P.states()
            fd += F.states()
            if fd >= WINDOW or F.kind == 'branch' and F.op == 's_branch': break
    return res

def finalize(lines):
    ins = [Ins(l) for l in lines]
    ins = fix_linear(ins)
    for _ in range(10):
        r = check_edges(ins)
        if not r: break
        for idx in sorted(r, reverse=True):
            ins.insert(idx+1, Ins('s_nop %d' % (r[idx]-1)))
        ins = fix_linear(ins)
    else:
        raise RuntimeError('edge hazards did not converge')
    return [I.text for I in ins]

class Asm:
    def __init__(self):
        self.lines = []
    def __call__(self, s):
        for l in s.split('\n'):
            l = l.strip()
            if l: self.lines.append(l)
    def label(self, name): self.lines.append(name + ':')

def vr(base, n=1, kind='v'):
    return f'{kind}{base}' if n == 1 else f'{kind}[{base}:{base+n-1}]'
```

```python
import sys, os
sys.path.insert(0, os.path.dirname(os.path.abspath(__file__)))
from asmlib import Asm, finalize, vr

NAME = 'interleave_layers__gqa_block_cached__gqa_block_cached__decode'

class Cfg:
    n1 = 4; n2 = 10; n3 = 10; n4 = 8
    diag = False
    limit = 200000
    nrounds = 18
    dump = None
    stop_round = None

QB   = 0
LAMB = 19*16384
YB   = LAMB + 18*4096
PB   = YB + 18*28672
PSZ  = 524288
POISON_PER_WG = 6144
assert PB + PSZ <= 256*POISON_PER_WG
WS_USED = PB + 3*PSZ
DIAGB = 4*1024*1024
WS_RECORDS = 64*1024*1024

L_WQ = 0; L_WO = 32768; L_OC = 65536; L_QS = 81920; L_X0 = 90112; L_X = 98304; L_O2 = 101376; L_ST = 102400
LDS_BYTES = 102656

P = {}
for i, nme in enumerate(['vK','vV','vPw','vPg','vLg','vLw','vYw','vYg','vYg2','vQw','vQg',
                         'aQSw','aQr','aOCw','aSTw','aOCr','aSTr','aO2w','aO2r','aWOr','aWQr','aXr','aXu','aXu2',
                         'm0','m1','m2','m3','vT']):
    P[nme] = 'v%d' % (i+1)
MASK = [P['m0'],P['m1'],P['m2'],P['m3']]

sK, sV, sWS, sOUT, sTMP = 44, 48, 52, 56, 60
S = dict(k=64, wave=65, h=66, r=67, off0=68, off1=69, Qr=76, Qo=77, Qy=78, Lam=79, Y=80, Pq=81, P4=82, Pn=83,
         Pw=84, Lw=85, ypos=86, ring=87, cnt=88, acc=89, t0=90, t1=91, t2=92, t3=93, t4=94, t5=95, odd=70, old896=71,
         bn=72, ob=73, ts0=96, ts1=97, wg=74, ringn=75)
S = {k: 's%d' % v for k, v in S.items()}
def srd(b): return 's[%d:%d]' % (b, b+3)

CEXP = 0.09016844005556021
import struct
def f2u(x): return struct.unpack('<I', struct.pack('<f', x))[0]

def ureg(u, off, n=4):
    if u == 0: return vr(off, n, 'a')
    if u == 1: return vr(128+off, n, 'a')
    return vr(128+off, n, 'v')

KORD = [(t, kk) for t in range(2) for kk in range(8)]
VORD = [(t, i, hf) for t in range(2) for i in range(4) for hf in range(2)]
def kreg(u, t, kk): return ureg(u, (t*8+kk)*4)
def vreg(u, t, i, hf): return ureg(u, 64 + ((t*4+i)*2+hf)*4)

def stream_load(a, u, idx):
    if idx < 16:
        t, kk = KORD[idx]
        a(f"buffer_load_dwordx4 {kreg(u,t,kk)}, {P['vK']}, {srd(sK)}, {S['off1'] if t else S['off0']} offen offset:{kk*64} nt")
    else:
        t, i, hf = VORD[idx-16]
        a(f"buffer_load_dwordx4 {vreg(u,t,i,hf)}, {P['vV']}, {srd(sV)}, {S['off1'] if t else S['off0']} offen offset:{i*512+hf*256} nt")

class Gen:
    def __init__(self, cfg):
        self.c = cfg
        self.a = Asm()
        self.tail = Asm()
        self.stamp_i = 0

    def stamp(self, idx):
        if not self.c.diag: return
        a = self.a
        a(f"s_memrealtime s[{96}:{97}]")
        a("s_waitcnt lgkmcnt(0)")
        a(f"v_writelane_b32 {P['vT']}, s96, {idx}")

    def init(self):
        a = self.a; c = self.c
        a(f"s_cmp_ge_u32 s2, 256")
        a(f"s_cbranch_scc1 L_end")
        a("s_load_dwordx16 s[16:31], s[0:1], 0")
        a("s_load_dwordx8 s[32:39], s[0:1], 64")
        a("s_load_dwordx2 s[40:41], s[0:1], 96")
        a(f"s_mov_b32 {S['wg']}, s2")
        a(f"s_and_b32 {S['h']}, s2, 7")
        a(f"s_lshr_b32 {S['r']}, s2, 3")
        a("v_and_b32 v32, 63, v0")
        a("v_lshrrev_b32 v35, 6, v0")
        a("v_and_b32 v33, 15, v32")
        a("v_lshrrev_b32 v34, 4, v32")
        a(f"v_readfirstlane_b32 {S['wave']}, v35")
        a(f"s_lshl_b32 {S['t0']}, {S['h']}, 21")
        a(f"s_lshl_b32 {S['t1']}, {S['r']}, 16")
        a(f"s_add_u32 {S['t0']}, {S['t0']}, {S['t1']}")
        a(f"s_lshl_b32 {S['t1']}, {S['wave']}, 14")
        a(f"s_add_u32 {S['t0']}, {S['t0']}, {S['t1']}")
        a("v_lshlrev_b32 v36, 9, v33")
        a("v_lshl_add_u32 v36, v34, 4, v36")
        a(f"v_add_u32 {P['vK']}, {S['t0']}, v36")
        a("v_lshlrev_b32 v36, 11, v34")
        a("v_lshl_add_u32 v36, v33, 4, v36")
        a(f"v_add_u32 {P['vV']}, {S['t0']}, v36")
        a(f"s_mov_b32 {S['off0']}, 0")
        a(f"s_mov_b32 {S['off1']}, 8192")
        a("s_waitcnt lgkmcnt(0)")
        for b, lo in ((sK, 18), (sV, 20), (sWS, 40), (sOUT, 36)):
            a(f"s_mov_b32 s{b}, s{lo}"); a(f"s_mov_b32 s{b+1}, s{lo+1}"); a(f"s_mov_b32 s{b+3}, 0x00020000")
        a(f"s_mov_b32 s{sK+2}, 0x08000000"); a(f"s_mov_b32 s{sV+2}, 0x08000000")
        a(f"s_mov_b32 s{sWS+2}, {WS_RECORDS}"); a(f"s_mov_b32 s{sOUT+2}, 7168")
        a(f"s_mul_i32 {S['t1']}, s2, {POISON_PER_WG}")
        a("v_lshlrev_b32 v36, 4, v0")
        a(f"v_add_u32 v36, {S['t1']}, v36")
        a("v_mov_b32 v40, -1"); a("v_mov_b32 v41, -1"); a("v_mov_b32 v42, -1"); a("v_mov_b32 v43, -1")
        a(f"buffer_store_dwordx4 v[40:43], v36, {srd(sWS)}, 0 offen sc1")
        a("v_add_u32 v37, 4096, v36")
        a("v_cmp_gt_u32 vcc, 128, v0")
        a("v_mov_b32 v38, 0x7fff0000")
        a("v_cndmask_b32 v37, v38, v37, vcc")
        a(f"buffer_store_dwordx4 v[40:43], v37, {srd(sWS)}, 0 offen sc1")
        a("v_lshrrev_b32 v44, 1, v32")
        a("v_lshlrev_b32 v44, 13, v44")
        a("v_and_b32 v45, 1, v32")
        a("v_lshl_add_u32 v44, v45, 4, v44")
        a(f"s_lshl_b32 {S['t1']}, {S['h']}, 10")
        a(f"s_lshl_b32 {S['t2']}, {S['r']}, 5")
        a(f"s_add_u32 {S['t1']}, {S['t1']}, {S['t2']}")
        a(f"s_lshl_b32 {S['t2']}, {S['wave']}, 18")
        a(f"s_add_u32 {S['t1']}, {S['t1']}, {S['t2']}")
        a(f"v_add_u32 v44, {S['t1']}, v44")
        def tmp_srd(lo, nrec):
            a(f"s_mov_b32 s{sTMP}, s{lo}"); a(f"s_mov_b32 s{sTMP+1}, s{lo+1}")
            a(f"s_mov_b32 s{sTMP+2}, {nrec}"); a(f"s_mov_b32 s{sTMP+3}, 0x00020000")
        a(f"s_mov_b32 {S['t2']}, 0"); a(f"s_mov_b32 {S['t3']}, {1<<20}"); a(f"s_mov_b32 {S['t4']}, {2<<20}"); a(f"s_mov_b32 {S['t5']}, {3<<20}")
        tt = [S['t2'], S['t3'], S['t4'], S['t5']]
        tmp_srd(22, 3670016)
        for i in range(4):
            a(f"buffer_load_dwordx4 {vr(48+4*i,4)}, v44, {srd(sTMP)}, {tt[i]} offen")
        tmp_srd(16, 7168)
        a("v_lshlrev_b32 v46, 4, v0")
        a(f"buffer_load_dwordx4 v[64:67], v46, {srd(sTMP)}, 0 offen")
        a("v_add_u32 v47, 4096, v46")
        a(f"buffer_load_dwordx4 v[68:71], v47, {srd(sTMP)}, 0 offen")
        for i in range(16): stream_load(a, 0, i)
        tmp_srd(32, 3670016)
        for i in range(4):
            a(f"buffer_load_dwordx4 {vr(72+4*i,4)}, v44, {srd(sTMP)}, {tt[i]} offen")
        a(f"s_and_b32 {S['t0']}, {S['r']}, 1")
        a(f"s_lshl_b32 {S['t1']}, {S['h']}, 1")
        a(f"s_add_u32 {S['t1']}, {S['t1']}, {S['t0']}")
        a(f"s_lshl_b32 {S['t1']}, {S['t1']}, 8")
        a(f"s_lshr_b32 {S['t0']}, {S['wave']}, 1")
        a(f"s_lshl_b32 {S['t0']}, {S['t0']}, 7")
        a(f"s_add_u32 {S['t1']}, {S['t1']}, {S['t0']}")
        a(f"s_mul_i32 {S['t1']}, {S['t1']}, 896")
        a(f"s_lshr_b32 {S['t0']}, {S['r']}, 1")
        a(f"s_mul_i32 {S['t0']}, {S['t0']}, 56")
        a(f"s_add_u32 {S['t1']}, {S['t1']}, {S['t0']}")
        a(f"s_and_b32 {S['t0']}, {S['wave']}, 1")
        a(f"s_lshl_b32 {S['t0']}, {S['t0']}, 5")
        a(f"s_add_u32 {S['t1']}, {S['t1']}, {S['t0']}")
        a("v_lshrrev_b32 v45, 1, v32")
        a(f"s_movk_i32 {S['t0']}, 896")
        a(f"v_mul_lo_u32 v45, v45, {S['t0']}")
        a("v_and_b32 v46, 1, v32")
        a("v_lshl_add_u32 v45, v46, 4, v45")
        a(f"v_add_u32 v45, {S['t1']}, v45")
        a(f"s_mov_b32 {S['t3']}, 28672"); a(f"s_mov_b32 {S['t4']}, {2*28672}"); a(f"s_mov_b32 {S['t5']}, {3*28672}")
        tmp_srd(24, 3670016)
        for i in range(4):
            a(f"buffer_load_dwordx4 {vr(88+4*i,4)}, v45, {srd(sTMP)}, {tt[i]} offen")
        tmp_srd(34, 3670016)
        for i in range(4):
            a(f"buffer_load_dwordx4 {vr(104+4*i,4)}, v45, {srd(sTMP)}, {tt[i]} offen")
        for i in range(16, 32-c.n1): stream_load(a, 0, i)
        nV0 = 16 - c.n1
        self.init_addrs()
        for i in range(128, 256): a(f"v_accvgpr_write_b32 a{i}, 0")
        for i in range(128, 256): a(f"v_mov_b32 v{i}, 0")
        a(f"s_waitcnt vmcnt({6+16+12+nV0})")
        a("s_barrier")
        a(f"s_cmp_lg_u32 {S['wave']}, 0")
        a("s_cbranch_scc1 L_noatomic")
        a(f"s_mov_b32 s{sTMP}, s38"); a(f"s_mov_b32 s{sTMP+1}, s39"); a(f"s_mov_b32 s{sTMP+2}, 256"); a(f"s_mov_b32 s{sTMP+3}, 0x00020000")
        a(f"s_lshl_b32 {S['t0']}, {S['h']}, 5")
        a(f"v_mov_b32 v36, {S['t0']}")
        a("v_mov_b32 v37, 1")
        a("s_mov_b64 exec, 1")
        a(f"buffer_atomic_add v37, v36, {srd(sTMP)}, 0 offen sc1")
        a("s_mov_b64 exec, -1")
        a.label("L_noatomic")
        a(f"s_waitcnt vmcnt({16+12+nV0})")
        a("v_lshlrev_b32 v36, 4, v32")
        a(f"s_lshl_b32 {S['t0']}, {S['wave']}, 10")
        a(f"v_add_u32 v36, {S['t0']}, v36")
        for i in range(4):
            a(f"ds_write_b128 v36, {vr(48+4*i,4)} offset:{L_WQ + i*4096}")
        a("v_lshlrev_b32 v46, 4, v0")
        a(f"v_add_u32 v47, {L_X0}, v46")
        a("ds_write_b128 v47, v[64:67] offset:0")
        a("ds_write_b128 v47, v[68:71] offset:4096")
        a(f"v_add_u32 v47, {L_X}, v46")
        a("v_cmp_gt_u32 vcc, 112, v0")
        a("s_and_saveexec_b64 s[90:91], vcc")
        a("ds_write_b128 v47, v[64:67]")
        a("s_mov_b64 exec, -1")
        a("v_mov_b32 v64, 0x3f803f80"); a("v_mov_b32 v65, v64"); a("v_mov_b32 v66, v64"); a("v_mov_b32 v67, v64")
        a("v_subrev_u32 v46, 192, v0")
        a("v_cmp_gt_u32 vcc, 56, v46")
        a("v_lshlrev_b32 v46, 4, v46")
        a(f"v_add_u32 v47, {L_X+1792}, v46")
        a("s_and_saveexec_b64 s[90:91], vcc")
        a("s_cbranch_execz L_noones")
        a("ds_write_b128 v47, v[64:67]")
        a.label("L_noones")
        a("s_mov_b64 exec, -1")
        a(f"s_waitcnt vmcnt({nV0})")
        for i in range(4):
            a(f"ds_write_b128 v36, {vr(72+4*i,4)} offset:{L_WQ + 16384 + i*4096}")
        a(f"s_and_b32 {S['t0']}, {S['wave']}, 1"); a(f"s_lshl_b32 {S['t0']}, {S['t0']}, 13")
        a(f"s_lshr_b32 {S['t1']}, {S['wave']}, 1"); a(f"s_lshl_b32 {S['t1']}, {S['t1']}, 12")
        a(f"s_add_u32 {S['t0']}, {S['t0']}, {S['t1']}")
        a("v_lshlrev_b32 v37, 4, v32")
        a(f"v_add_u32 v37, {S['t0']}, v37")
        for i in range(4):
            a(f"ds_write_b128 v37, {vr(88+4*i,4)} offset:{L_WO + i*1024}")
        for i in range(4):
            a(f"ds_write_b128 v37, {vr(104+4*i,4)} offset:{L_WO + 16384 + i*1024}")
        a(f"s_mov_b32 {S['k']}, 0")
        a(f"s_mov_b32 {S['Qr']}, {QB}")
        a(f"s_mov_b32 {S['Qy']}, {QB}")
        a(f"s_mov_b32 {S['Qo']}, {QB+8192}")
        a(f"s_mov_b32 {S['ring']}, 0")
        a(f"s_mov_b32 {S['acc']}, 0")
        a("s_waitcnt lgkmcnt(0)")
        a(f"s_cmp_lg_u32 {S['wave']}, 0")
        a("s_cbranch_scc1 L_polled")
        a(f"s_mov_b32 {S['cnt']}, 0")
        a.label("L_poll")
        for hh in range(8):
            a(f"s_load_dword s{4+hh}, s[38:39], {hh*32} glc")
        a("s_waitcnt lgkmcnt(0)")
        a("s_and_b32 s12, s4, s5"); a("s_and_b32 s13, s6, s7"); a("s_and_b32 s14, s8, s9"); a("s_and_b32 s15, s10, s11")
        a("s_and_b32 s12, s12, s13"); a("s_and_b32 s14, s14, s15"); a("s_and_b32 s12, s12, s14")
        a("s_bitcmp1_b32 s12, 5")
        a("s_cbranch_scc1 L_polled")
        a(f"s_add_u32 {S['cnt']}, {S['cnt']}, 1")
        a(f"s_cmp_lt_u32 {S['cnt']}, {c.limit}")
        a("s_cbranch_scc1 L_poll")
        a.label("L_polled")
        a("s_barrier")
        a(f"s_cmp_lg_u32 {S['wave']}, 0")
        a("s_cbranch_scc1 L_top0")
        self.wq_preload()

    def init_addrs(self):
        a = self.a
        t0, t1, t2, t3 = S['t0'], S['t1'], S['t2'], S['t3']
        h, r, w = S['h'], S['r'], S['wave']
        a(f"s_and_b32 s4, {w}, 1")
        a(f"s_lshr_b32 s5, {w}, 1")
        a(f"s_and_b32 s6, {r}, 1")
        a(f"s_lshr_b32 s7, {r}, 1")
        a("v_lshlrev_b32 v36, 4, v32")
        a(f"s_lshl_b32 {t0}, {h}, 16"); a(f"s_lshl_b32 {t1}, s4, 14"); a(f"s_add_u32 {t0}, {t0}, {t1}")
        a(f"s_lshl_b32 {t1}, {r}, 8"); a(f"s_add_u32 {t0}, {t0}, {t1}")
        a("v_lshrrev_b32 v37, 5, v32"); a("v_lshlrev_b32 v37, 13, v37")
        a("v_and_b32 v38, 31, v32"); a("v_lshl_add_u32 v37, v38, 3, v37")
        a(f"v_add_u32 {P['vPw']}, {t0}, v37")
        a(f"s_lshl_b32 {t0}, {h}, 16"); a(f"s_lshl_b32 {t1}, s5, 15"); a(f"s_add_u32 {t0}, {t0}, {t1}")
        a(f"s_lshl_b32 {t1}, s6, 14"); a(f"s_add_u32 {t0}, {t0}, {t1}")
        a(f"s_lshl_b32 {t1}, s4, 13"); a(f"s_add_u32 {t0}, {t0}, {t1}")
        a(f"v_add_u32 {P['vPg']}, {t0}, v36")
        a(f"s_lshl_b32 {t0}, {h}, 9"); a(f"s_lshl_b32 {t1}, s5, 8"); a(f"s_add_u32 {t0}, {t0}, {t1}")
        a(f"s_lshl_b32 {t1}, s6, 7"); a(f"s_add_u32 {t0}, {t0}, {t1}")
        a("v_lshlrev_b32 v37, 5, v34")
        a(f"v_add_u32 {P['vLg']}, {t0}, v37")
        a(f"s_lshl_b32 {t0}, {h}, 9"); a(f"s_lshl_b32 {t1}, s4, 7"); a(f"s_add_u32 {t0}, {t0}, {t1}")
        a(f"s_and_b32 {t1}, {r}, 3"); a(f"s_lshl_b32 {t1}, {t1}, 5"); a(f"s_add_u32 {t0}, {t0}, {t1}")
        a(f"s_lshr_b32 {t1}, {r}, 2"); a(f"s_lshl_b32 {t1}, {t1}, 2"); a(f"s_add_u32 {t0}, {t0}, {t1}")
        a(f"v_mov_b32 {P['vLw']}, {t0}")
        a(f"s_mul_i32 {t0}, s7, 28"); a(f"s_lshl_b32 {t1}, s4, 4"); a(f"s_add_u32 {t0}, {t0}, {t1}")
        a("v_and_b32 v37, 1, v33"); a(f"s_movk_i32 {t1}, 448"); a(f"v_mul_lo_u32 v37, v37, {t1}")
        a("v_lshl_add_u32 v37, v34, 2, v37"); a(f"v_add_u32 v37, {t0}, v37")
        a("v_lshrrev_b32 v38, 7, v37"); a("v_lshlrev_b32 v38, 12, v38")
        a("v_and_b32 v37, 127, v37"); a("v_lshl_add_u32 v37, v37, 1, v38")
        a(f"s_lshl_b32 {t0}, {h}, 1"); a(f"s_add_u32 {t0}, {t0}, s6"); a(f"s_lshl_b32 {t0}, {t0}, 8")
        a(f"v_add_u32 {P['vYw']}, {t0}, v37")
        a(f"s_lshl_b32 {t0}, {w}, 12"); a(f"v_add_u32 {P['vYg']}, {t0}, v36")
        a(f"s_add_u32 {t1}, {w}, 4"); a(f"s_cmp_eq_u32 {w}, 3"); a(f"s_cselect_b32 s8, 3, {t1}")
        a(f"s_lshl_b32 {t0}, s8, 12"); a(f"v_add_u32 {P['vYg2']}, {t0}, v36")
        a(f"s_lshl_b32 {t0}, {h}, 10"); a(f"s_lshl_b32 {t1}, {r}, 5"); a(f"s_add_u32 {t0}, {t0}, {t1}")
        a("v_and_b32 v37, 1, v33"); a("v_lshlrev_b32 v37, 13, v37"); a("v_lshl_add_u32 v37, v34, 3, v37")
        a(f"v_add_u32 {P['vQw']}, {t0}, v37")
        a(f"s_lshl_b32 {t0}, {h}, 10"); a(f"v_add_u32 {P['vQg']}, {t0}, v36")
        a(f"s_lshl_b32 {t0}, {w}, 11"); a(f"s_add_u32 {t0}, {t0}, {L_QS}")
        a(f"v_add_u32 {P['aQSw']}, {t0}, v36")
        a("v_lshrrev_b32 v37, 3, v33"); a("v_lshlrev_b32 v37, 9, v37"); a("v_lshl_add_u32 v37, v34, 4, v37")
        a(f"v_add_u32 {P['aQr']}, {t0}, v37")
        a(f"s_lshl_b32 {t0}, {w}, 12"); a(f"s_add_u32 {t0}, {t0}, {L_OC}")
        a("v_lshrrev_b32 v37, 1, v34"); a("v_lshlrev_b32 v37, 10, v37"); a("v_lshl_add_u32 v37, v33, 5, v37")
        a("v_and_b32 v38, 1, v34"); a("v_lshl_add_u32 v37, v38, 4, v37")
        a(f"v_add_u32 {P['aOCw']}, {t0}, v37")
        a(f"s_lshl_b32 {t0}, {w}, 3"); a(f"s_add_u32 {t0}, {t0}, {L_ST}")
        a("v_lshrrev_b32 v37, 3, v33"); a("v_lshlrev_b32 v37, 5, v37")
        a(f"v_add_u32 {P['aSTw']}, {t0}, v37")
        a(f"s_lshl_b32 {t0}, {w}, 10"); a(f"s_add_u32 {t0}, {t0}, {L_OC}")
        a(f"v_add_u32 {P['aOCr']}, {t0}, v36")
        a(f"s_lshl_b32 {t0}, {w}, 5"); a(f"s_add_u32 {t0}, {t0}, {L_ST}")
        a(f"v_mov_b32 {P['aSTr']}, {t0}")
        a(f"s_lshl_b32 {t0}, s5, 9"); a(f"s_lshl_b32 {t1}, s4, 8"); a(f"s_add_u32 {t0}, {t0}, {t1}"); a(f"s_add_u32 {t0}, {t0}, {L_O2}")
        a("v_and_b32 v38, 1, v34"); a("v_lshlrev_b32 v37, 4, v33"); a("v_lshl_add_u32 v39, v38, 3, v37")
        a(f"v_add_u32 {P['aO2w']}, {t0}, v39")
        a(f"s_lshl_b32 {t0}, {w}, 8"); a(f"s_add_u32 {t0}, {t0}, {L_X}"); a(f"v_add_u32 {P['aXu']}, {t0}, v39")
        a(f"s_lshl_b32 {t0}, s8, 8"); a(f"s_add_u32 {t0}, {t0}, {L_X}"); a(f"v_add_u32 {P['aXu2']}, {t0}, v39")
        a("v_and_b32 v37, 1, v33"); a("v_lshlrev_b32 v37, 9, v37"); a("v_lshl_add_u32 v37, v34, 4, v37")
        a(f"v_add_u32 {P['aO2r']}, {L_O2}, v37")
        a("v_lshlrev_b32 v37, 8, v34"); a("v_lshl_add_u32 v37, v33, 3, v37")
        a(f"v_add_u32 {P['aWQr']}, {L_WQ}, v37")
        a(f"s_lshl_b32 {t0}, s4, 13"); a(f"s_add_u32 {t0}, {t0}, {L_WO}")
        a(f"v_add_u32 {P['aWOr']}, {t0}, v37")
        a("v_and_b32 v37, 3, v33"); a("v_min_u32 v37, 2, v37"); a(f"s_movk_i32 {t1}, 896"); a(f"v_mul_lo_u32 v37, v37, {t1}")
        a("v_lshl_add_u32 v37, v34, 4, v37"); a(f"v_add_u32 {P['aXr']}, {L_X}, v37")
        a("v_and_b32 v37, 1, v33"); a("v_cmp_eq_u32 vcc, 1, v37")
        a("v_mov_b32 v38, 0xffff"); a("v_mov_b32 v39, 0xffff0000"); a("v_cndmask_b32 v38, v38, v39, vcc")
        a("v_lshrrev_b32 v37, 1, v33"); a("v_and_b32 v37, 3, v37")
        for rr in range(4):
            a(f"v_cmp_eq_u32 vcc, {rr}, v37"); a(f"v_cndmask_b32 {MASK[rr]}, 0, v38, vcc")
        if self.c.diag: a(f"v_mov_b32 {P['vT']}, 0")

    def wq_preload(self):
        a = self.a
        for kk in range(8):
            a(f"ds_read_b64_tr_b16 {vr(96+4*kk,2)}, {P['aWQr']} offset:{kk*1024}")
            a(f"ds_read_b64_tr_b16 {vr(98+4*kk,2)}, {P['aWQr']} offset:{kk*1024+128}")
            if kk == 5: a("s_waitcnt lgkmcnt(6)")

    def qproj(self, rho):
        a = self.a
        Bs = [32+4*i for i in range(14)]
        acc, gr = 92, 88
        for kk in range(14):
            a(f"ds_read_b128 {vr(Bs[kk],4)}, {P['aXr']} offset:{kk*64}")
        a("s_waitcnt lgkmcnt(7)")
        for kk in range(7):
            c0 = '0' if kk == 0 else vr(acc,4); g0 = '0' if kk == 0 else vr(gr,4)
            a(f"v_mfma_f32_16x16x32_bf16 {vr(acc,4)}, {vr(96+4*kk,4)}, {vr(Bs[kk],4)}, {c0}")
            a(f"v_mfma_f32_16x16x32_bf16 {vr(gr,4)}, {vr(Bs[kk],4)}, {vr(Bs[kk],4)}, {g0}")
            if kk < 6:
                a(f"ds_read_b64_tr_b16 {vr(96+4*kk,2)}, {P['aWQr']} offset:{(8+kk)*1024}")
                a(f"ds_read_b64_tr_b16 {vr(98+4*kk,2)}, {P['aWQr']} offset:{(8+kk)*1024+128}")
            if kk == 3: a("s_waitcnt lgkmcnt(8)")
        for kk in range(7, 14):
            if kk >= 8: a(f"s_waitcnt lgkmcnt({2*(13-kk)})")
            wa = 96+4*7 if kk == 7 else 96+4*(kk-8)
            a(f"v_mfma_f32_16x16x32_bf16 {vr(acc,4)}, {vr(wa,4)}, {vr(Bs[kk],4)}, {vr(acc,4)}")
            a(f"v_mfma_f32_16x16x32_bf16 {vr(gr,4)}, {vr(Bs[kk],4)}, {vr(Bs[kk],4)}, {vr(gr,4)}")
        a("v_and_b32 v32, 1, v0")
        a("v_cmp_eq_u32 vcc, 1, v32")
        a(f"v_mov_b32 v34, {hex(f2u(1.0/448))}")
        a(f"v_cndmask_b32 v33, v{gr}, v{gr+1}, vcc")
        a(f"v_mul_f32 v35, v{gr+2}, v34")
        a("v_mul_f32 v33, v33, v34")
        a("v_fma_f32 v33, -v35, v35, v33")
        a("v_max_f32 v33, 0, v33")
        a(f"v_add_f32 v33, {hex(f2u(1e-5))}, v33")
        a("v_rsq_f32 v33, v33")
        a("v_sub_f32 v35, 0, v35")
        for i in range(4):
            a(f"v_fmac_f32_dpp v{acc+i}, v{acc+i}, v35 row_shl:2 row_mask:0xf bank_mask:0xf")
        for i in range(4):
            a(f"v_mul_f32 v{acc+i}, v{acc+i}, v33")
        a(f"v_cvt_pk_bf16_f32 v36, v{acc}, v{acc+1}")
        a(f"v_cvt_pk_bf16_f32 v37, v{acc+2}, v{acc+3}")
        a("v_min_u32 v36, -2, v36"); a("v_min_u32 v37, -2, v37")
        a("s_mov_b32 exec_lo, 0x00030003"); a("s_mov_b32 exec_hi, 0x00030003")
        a(f"buffer_store_dwordx2 v[36:37], {P['vQw']}, {srd(sWS)}, {S['Qr']} offen sc1")
        a("s_mov_b64 exec, -1")

    def g3_issue(self, a):
        a(f"buffer_load_dwordx4 v[112:115], {P['vQg']}, {srd(sWS)}, {S['Qo']} offen sc1")
        a(f"buffer_load_dwordx4 v[116:119], {P['vQg']}, {srd(sWS)}, {S['Qy']} offen sc1")
    def g3_check(self, a):
        a("v_max3_u32 v120, v112, v113, v114")
        a("v_max3_u32 v121, v115, v116, v117")
        a("v_max3_u32 v120, v120, v118, v119")
        a("v_max_u32 v120, v120, v121")
        a("v_cmp_eq_u32 vcc, -1, v120")

    def g1_issue(self, a):
        for ld in range(8):
            a(f"buffer_load_dwordx4 {vr(32+4*ld,4)}, {P['vPg']}, {srd(sWS)}, {S['Pq'] if ld < 4 else S['P4']} offen offset:{(ld%4)*1024} sc1")
        a(f"buffer_load_dwordx4 v[64:67], {P['vLg']}, {srd(sWS)}, {S['Lam']} offen sc1")
        a(f"buffer_load_dwordx4 v[68:71], {P['vLg']}, {srd(sWS)}, {S['Lam']} offen offset:16 sc1")
    def g2_issue(self, a):
        for s in range(2):
            for rho in range(4):
                a(f"buffer_load_dwordx4 {vr(32+16*s+4*rho,4)}, {P['vYg2'] if s else P['vYg']}, {srd(sWS)}, {S['Y']} offen offset:{rho*1024} sc1")
    def exact_check(self, a, lo, hi):
        regs = list(range(lo, hi))
        a(f"v_max3_u32 v79, v{regs[0]}, v{regs[1]}, v{regs[2]}")
        i = 3
        while i < len(regs):
            if i+1 < len(regs):
                a(f"v_max3_u32 v79, v79, v{regs[i]}, v{regs[i+1]}"); i += 2
            else:
                a(f"v_max_u32 v79, v79, v{regs[i]}"); i += 1
        a("v_cmp_eq_u32 vcc, -1, v79")

    def xrow_reduce(self, a, reg, tmp, op):
        a(f"v_mov_b32 v{tmp}, v{reg}")
        a(f"v_permlane16_swap_b32 v{tmp}, v{reg}")
        a(f"{op} v{reg}, v{reg}, v{tmp}")
        a(f"v_mov_b32 v{tmp}, v{reg}")
        a(f"v_permlane32_swap_b32 v{tmp}, v{reg}")
        a(f"{op} v{reg}, v{reg}, v{tmp}")

    def round(self, rho):
        a = self.a; c = self.c; tl = self.tail
        Uy = rho; Uo = (rho+1) % 3
        n1, n2, n3, n4 = c.n1, c.n2, c.n3, c.n4
        order = list(range(32))
        X2 = order[:n2]; X3 = order[n2:n2+n3]; X4 = order[n2+n3:n2+n3+n4]; X1 = order[32-n1:]
        assert n2 <= 16 and n2+n3+n4+n1 == 32 and 32-n1 >= 16
        a.label(f"L_top{rho}")
        self.stamp(0)
        a("s_waitcnt lgkmcnt(0)")
        a("s_barrier")
        self.stamp(1)
        a(f"s_cmp_lg_u32 {S['wave']}, 0")
        a(f"s_cbranch_scc1 L_g3_{rho}")
        self.qproj(rho)
        a.label(f"L_g3_{rho}")
        self.stamp(2)
        self.g3_issue(a)
        for i in X1: stream_load(a, Uy, i)
        k = S['k']
        a(f"s_add_u32 {S['t0']}, {k}, 1")
        a(f"s_lshr_b32 {S['t1']}, {S['t0']}, 1"); a(f"s_lshl_b32 {S['off0']}, {S['t1']}, 24"); a(f"s_add_u32 {S['off1']}, {S['off0']}, 8192")
        a(f"s_cmp_lt_u32 {S['t0']}, 16"); a(f"s_cselect_b32 {S['t2']}, 0x08000000, 0")
        a(f"s_mov_b32 s{sK+2}, {S['t2']}"); a(f"s_mov_b32 s{sV+2}, {S['t2']}")
        a(f"s_cselect_b32 {S['off0']}, {S['off0']}, 0"); a(f"s_cselect_b32 {S['off1']}, {S['off1']}, 0")
        a(f"s_bitcmp1_b32 {S['t0']}, 0")
        a(f"s_cselect_b32 s{sK}, s28, s18"); a(f"s_cselect_b32 s{sK+1}, s29, s19")
        a(f"s_cselect_b32 s{sV}, s30, s20"); a(f"s_cselect_b32 s{sV+1}, s31, s21")
        a(f"s_lshl_b32 {S['t1']}, {k}, 12"); a(f"s_add_u32 {S['Lam']}, {S['t1']}, {LAMB}")
        a(f"s_mul_i32 {S['t1']}, {k}, 28672"); a(f"s_add_u32 {S['Y']}, {S['t1']}, {YB}")
        a(f"s_mul_i32 {S['t1']}, {S['ring']}, {PSZ}"); a(f"s_add_u32 {S['Pq']}, {S['t1']}, {PB}"); a(f"s_add_u32 {S['P4']}, {S['Pq']}, 4096")
        a(f"s_add_u32 {S['ringn']}, {S['ring']}, 1"); a(f"s_cmp_eq_u32 {S['ringn']}, 3"); a(f"s_cselect_b32 {S['ringn']}, 0, {S['ringn']}")
        a(f"s_lshr_b32 {S['t2']}, {S['wave']}, 1")
        a(f"s_mul_i32 {S['t1']}, {S['ringn']}, {PSZ}"); a(f"s_add_u32 {S['Pn']}, {S['t1']}, {PB}")
        a(f"s_lshl_b32 {S['t1']}, {S['t2']}, 15"); a(f"s_add_u32 {S['Pn']}, {S['Pn']}, {S['t1']}")
        a(f"s_lshr_b32 {S['ypos']}, {k}, 1"); a(f"s_and_b32 {S['ypos']}, {S['ypos']}, 1")
        a(f"s_xor_b32 {S['t3']}, {S['ypos']}, {S['t2']}"); a(f"s_xor_b32 {S['t3']}, {S['t3']}, 1")
        a(f"s_lshl_b32 {S['t1']}, {S['t3']}, 15"); a(f"s_add_u32 {S['Pw']}, {S['Pq']}, {S['t1']}")
        a(f"s_lshl_b32 {S['t1']}, {S['t3']}, 8"); a(f"s_add_u32 {S['Lw']}, {S['Lam']}, {S['t1']}")
        a(f"s_and_b32 {S['odd']}, {k}, 1")
        a(f"s_xor_b32 {S['t1']}, {S['ypos']}, 1"); a(f"s_mul_i32 {S['old896']}, {S['t1']}, 896")
        a(f"s_lshr_b32 {S['t1']}, {k}, 1"); a(f"s_add_u32 {S['t3']}, {S['t1']}, 1"); a(f"s_min_u32 {S['t3']}, {S['t3']}, 7")
        a(f"s_mul_i32 {S['bn']}, {S['t3']}, 896"); a(f"s_add_u32 {S['bn']}, {S['bn']}, {L_X0}")
        a(f"s_sub_u32 {S['ob']}, {S['t1']}, 1"); a(f"s_mul_i32 {S['ob']}, {S['ob']}, 896")
        a(f"s_waitcnt vmcnt({n1})")
        self.g3_check(a)
        a(f"s_cbranch_vccnz L_g3r_{rho}")
        a.label(f"L_g3ok_{rho}")
        self.stamp(3)
        tl.label(f"L_g3r_{rho}")
        tl(f"s_mov_b32 {S['cnt']}, 0")
        tl.label(f"L_g3rl_{rho}")
        self.g3_issue(tl)
        tl("s_waitcnt vmcnt(0)")
        self.g3_check(tl)
        tl(f"s_cbranch_vccz L_g3ok_{rho}")
        tl(f"s_add_u32 {S['cnt']}, {S['cnt']}, 1"); tl(f"s_cmp_lt_u32 {S['cnt']}, {c.limit}")
        tl(f"s_cbranch_scc1 L_g3rl_{rho}")
        tl(f"s_branch L_g3ok_{rho}")
        a(f"ds_write_b128 {P['aQSw']}, v[112:115]")
        a(f"ds_write_b128 {P['aQSw']}, v[116:119] offset:1024")
        a("v_mov_b32 v120, -1"); a("v_mov_b32 v121, -1")
        a(f"buffer_store_dwordx2 v[120:121], {P['vPw']}, {srd(sWS)}, {S['Pn']} offen sc1")
        for kk in range(8):
            a(f"ds_read_b128 {vr(32+4*kk,4)}, {P['aQr']} offset:{kk*64}")
        SCo, SCy = 64, 72
        for kk in range(8):
            a(f"s_waitcnt lgkmcnt({7 if kk else 7})" if kk == 0 else "s_waitcnt lgkmcnt(7)")
            for t in range(2):
                cc = '0' if kk == 0 else vr(SCo+4*t,4)
                a(f"v_mfma_f32_16x16x32_bf16 {vr(SCo+4*t,4)}, {kreg(Uo,t,kk)}, {vr(32+4*kk,4)}, {cc}")
            a(f"ds_read_b128 {vr(32+4*kk,4)}, {P['aQr']} offset:{1024+kk*64}")
        for i in X2: stream_load(a, Uo, i)
        self.stamp(4)
        for kk in range(8):
            a(f"s_waitcnt lgkmcnt({7-kk})")
            for t in range(2):
                cc = '0' if kk == 0 else vr(SCy+4*t,4)
                a(f"v_mfma_f32_16x16x32_bf16 {vr(SCy+4*t,4)}, {kreg(Uy,t,kk)}, {vr(32+4*kk,4)}, {cc}")
        MX = {0: 108, 1: 110}; LS = {0: 109, 1: 111}
        a(f"v_mov_b32 v127, {hex(f2u(CEXP))}")
        for role, SC in ((0, SCo), (1, SCy)):
            m = MX[role]; L = LS[role]
            a(f"v_max3_f32 v{m}, v{SC}, v{SC+1}, v{SC+2}")
            a(f"v_max3_f32 v88, v{SC+3}, v{SC+4}, v{SC+5}")
            a(f"v_max3_f32 v{m}, v{m}, v{SC+6}, v{SC+7}")
            a(f"v_max_f32 v{m}, v{m}, v88")
            self.xrow_reduce(a, m, 88, 'v_max_f32')
            a(f"v_mul_f32 v{m}, v{m}, v127")
            for i in range(8):
                a(f"v_fma_f32 v{SC+i}, v{SC+i}, v127, -v{m}")
            for i in range(8):
                a(f"v_exp_f32 v{SC+i}, v{SC+i}")
            a(f"v_add_f32 v{L}, v{SC}, v{SC+1}")
            a(f"v_add_f32 v88, v{SC+2}, v{SC+3}")
            a(f"v_add_f32 v89, v{SC+4}, v{SC+5}")
            a(f"v_add_f32 v90, v{SC+6}, v{SC+7}")
            a(f"v_add_f32 v{L}, v{L}, v88"); a(f"v_add_f32 v89, v89, v90"); a(f"v_add_f32 v{L}, v{L}, v89")
            self.xrow_reduce(a, L, 88, 'v_add_f32')
        self.stamp(5)
        OA = {0: 92, 1: 100}
        for role, SC, U in ((0, SCo, Uo), (1, SCy, Uy)):
            for t in range(2):
                for i in range(4):
                    pf = 80 + 4*((t*4+i) % 2)
                    a(f"v_cvt_pk_bf16_f32 v88, v{SC+4*t+i}, v{SC+4*t+i}")
                    for rr in range(4):
                        a(f"v_and_b32 v{pf+rr}, v88, {MASK[rr]}")
                    if role == 1:
                        e = (t*4+i)*2+1
                        if 16+e >= 32-n1:
                            j = 16+e-(32-n1)
                            a(f"s_waitcnt vmcnt({n1-1-j+1+n2})")
                    for hf in range(2):
                        cc = '0' if (t == 0 and i == 0) else vr(OA[role]+4*hf,4)
                        a(f"v_mfma_f32_16x16x32_bf16 {vr(OA[role]+4*hf,4)}, {vr(pf,4)}, {vreg(U,t,i,hf)}, {cc}")
        a("s_mov_b64 exec, 0x101")
        a(f"ds_write_b64 {P['aSTw']}, v[108:109]")
        a(f"ds_write_b64 {P['aSTw']}, v[110:111] offset:64")
        a("s_mov_b64 exec, -1")
        for role in range(2):
            for hf in range(2):
                a(f"ds_write_b128 {P['aOCw']}, {vr(OA[role]+4*hf,4)} offset:{role*2048+hf*512}")
        a("s_waitcnt lgkmcnt(0)")
        self.stamp(6)
        a("s_barrier")
        a(f"ds_read_b128 v[48:51], {P['aSTr']}")
        a(f"ds_read_b128 v[52:55], {P['aSTr']} offset:16")
        for sw in range(4):
            a(f"ds_read_b128 {vr(32+4*sw,4)}, {P['aOCr']} offset:{sw*4096}")
        a("s_waitcnt lgkmcnt(4)")
        a("v_max3_f32 v56, v48, v50, v52"); a("v_max_f32 v56, v56, v54")
        for sw in range(4):
            a(f"v_sub_f32 v{48+2*sw}, v{48+2*sw}, v56")
        for sw in range(4):
            a(f"v_exp_f32 v{48+2*sw}, v{48+2*sw}")
        a("v_mul_f32 v57, v48, v49"); a("v_fmac_f32 v57, v50, v51"); a("v_fmac_f32 v57, v52, v53"); a("v_fmac_f32 v57, v54, v55")
        a("v_rcp_f32 v58, v57"); a("v_log_f32 v59, v57")
        for sw in range(4):
            a(f"v_mul_f32 v{48+2*sw}, v{48+2*sw}, v58")
        a("v_add_f32 v59, v59, v56"); a("v_min_u32 v59, -2, v59")
        a("s_waitcnt lgkmcnt(0)")
        for i in range(4):
            a(f"v_mul_f32 v{60+i}, v{32+i}, v48")
        for sw in range(1, 4):
            for i in range(4):
                a(f"v_fmac_f32 v{60+i}, v{32+4*sw+i}, v{48+2*sw}")
        a("v_cvt_pk_bf16_f32 v64, v60, v61"); a("v_cvt_pk_bf16_f32 v65, v62, v63")
        a("v_min_u32 v64, -2, v64"); a("v_min_u32 v65, -2, v65")
        a(f"buffer_store_dwordx2 v[64:65], {P['vPw']}, {srd(sWS)}, {S['Pw']} offen sc1")
        a("s_mov_b64 exec, 1")
        a(f"buffer_store_dword v59, {P['vLw']}, {srd(sWS)}, {S['Lw']} offen sc1")
        a("s_mov_b64 exec, -1")
        self.stamp(7)
        self.g1_issue(a)
        for i in X3: stream_load(a, Uo, i)
        a(f"s_cmp_gt_u32 {S['wave']}, 1")
        a(f"s_cbranch_scc1 L_nowo_{rho}")
        for kk in range(8):
            a(f"ds_read_b64_tr_b16 {vr(96+4*kk,2)}, {P['aWOr']} offset:{kk*1024}")
            a(f"ds_read_b64_tr_b16 {vr(98+4*kk,2)}, {P['aWOr']} offset:{kk*1024+128}")
            if kk == 5: a("s_waitcnt lgkmcnt(6)")
        a.label(f"L_nowo_{rho}")
        a(f"s_waitcnt vmcnt({n3})")
        a.label(f"L_g1c_{rho}")
        self.stamp(8)
        a("v_max3_f32 v72, v64, v65, v66"); a("v_max3_f32 v73, v67, v68, v69"); a("v_max3_f32 v72, v72, v70, v71"); a("v_max_f32 v72, v72, v73")
        self.xrow_reduce(a, 72, 73, 'v_max_f32')
        for i in range(8): a(f"v_sub_f32 v{64+i}, v{64+i}, v72")
        for i in range(8): a(f"v_exp_f32 v{64+i}, v{64+i}")
        a("v_add_f32 v74, v64, v65"); a("v_add_f32 v75, v66, v67"); a("v_add_f32 v76, v68, v69"); a("v_add_f32 v77, v70, v71")
        a("v_add_f32 v74, v74, v75"); a("v_add_f32 v76, v76, v77"); a("v_add_f32 v74, v74, v76")
        self.xrow_reduce(a, 74, 73, 'v_add_f32')
        a("v_rcp_f32 v74, v74")
        for ld in range(8):
            pf = 80 + 4*(ld % 2)
            a(f"v_cvt_pk_bf16_f32 v88, v{64+ld}, v{64+ld}")
            for rr in range(4):
                a(f"v_and_b32 v{pf+rr}, v88, {MASK[rr]}")
            cc = '0' if ld == 0 else 'v[92:95]'
            a(f"v_mfma_f32_16x16x32_bf16 v[92:95], {vr(pf,4)}, {vr(32+4*ld,4)}, {cc}")
        for i in range(4): a(f"v_mul_f32 v{92+i}, v{92+i}, v74")
        a("v_add_f32 v76, v92, v93"); a("v_add_f32 v77, v94, v95"); a("v_add_f32 v76, v76, v77")
        a("v_cmp_u_f32 vcc, v76, v76")
        a(f"s_cbranch_vccnz L_g1r_{rho}")
        a.label(f"L_g1ok_{rho}")
        a(f"s_mov_b32 {S['acc']}, 0")
        tl.label(f"L_g1r_{rho}")
        tl(f"s_cmp_lg_u32 {S['acc']}, 0"); tl(f"s_cbranch_scc1 L_g1ok_{rho}")
        tl(f"s_mov_b32 {S['cnt']}, 0")
        tl.label(f"L_g1rl_{rho}")
        self.g1_issue(tl); tl("s_waitcnt vmcnt(0)")
        self.exact_check(tl, 32, 72)
        tl(f"s_mov_b32 {S['acc']}, 1")
        tl(f"s_cbranch_vccz L_g1c_{rho}")
        tl(f"s_add_u32 {S['cnt']}, {S['cnt']}, 1"); tl(f"s_cmp_lt_u32 {S['cnt']}, {c.limit}")
        tl(f"s_cbranch_scc1 L_g1rl_{rho}")
        tl(f"s_branch L_g1c_{rho}")
        a("v_cvt_pk_bf16_f32 v76, v92, v93"); a("v_cvt_pk_bf16_f32 v77, v94, v95")
        a(f"ds_write_b64 {P['aO2w']}, v[76:77]")
        a("s_waitcnt lgkmcnt(0)")
        self.stamp(9)
        a("s_barrier")
        a(f"s_cmp_gt_u32 {S['wave']}, 1")
        a(f"s_cbranch_scc1 L_g2_{rho}")
        for kk in range(8):
            a(f"ds_read_b128 {vr(32+4*kk,4)}, {P['aO2r']} offset:{kk*64}")
        for kk in range(8):
            a(f"s_waitcnt lgkmcnt({7-kk})")
            cc = '0' if kk == 0 else 'v[92:95]'
            a(f"v_mfma_f32_16x16x32_bf16 v[92:95], {vr(96+4*kk,4)}, {vr(32+4*kk,4)}, {cc}")
        a("v_cvt_pk_bf16_f32 v76, v92, v93"); a("v_cvt_pk_bf16_f32 v77, v94, v95")
        a("v_min_u32 v76, -2, v76"); a("v_min_u32 v77, -2, v77")
        a("s_mov_b32 exec_lo, 0x00030003")
        a(f"s_cmp_eq_u32 {S['wave']}, 0"); a(f"s_cselect_b32 exec_hi, 0x00030003, 0x00000003")
        a(f"buffer_store_dwordx2 v[76:77], {P['vYw']}, {srd(sWS)}, {S['Y']} offen sc1")
        a("s_mov_b64 exec, -1")
        a.label(f"L_g2_{rho}")
        self.stamp(10)
        self.g2_issue(a)
        for i in X4: stream_load(a, Uo, i)
        a(f"ds_read_b64 v[72:73], {P['aXu']}")
        a(f"ds_read_b64 v[74:75], {P['aXu2']}")
        a("v_mov_b32 v88, 0x3f803f80")
        for rr in range(4): a(f"v_and_b32 v{80+rr}, v88, {MASK[rr]}")
        a(f"v_xor_b32 {P['aWQr']}, 0x4000, {P['aWQr']}")
        a(f"v_xor_b32 {P['aWOr']}, 0x4000, {P['aWOr']}")
        a(f"s_add_u32 {S['t0']}, {k}, 1")
        a(f"s_lshl_b32 {S['t1']}, {S['t0']}, 14"); a(f"s_add_u32 {S['Qr']}, {S['t1']}, {QB}")
        a(f"s_lshr_b32 {S['t1']}, {S['t0']}, 1"); a(f"s_and_b32 {S['t1']}, {S['t1']}, 1"); a(f"s_lshl_b32 {S['t1']}, {S['t1']}, 13")
        a(f"s_add_u32 {S['Qy']}, {S['Qr']}, {S['t1']}"); a(f"s_xor_b32 {S['t1']}, {S['t1']}, 8192"); a(f"s_add_u32 {S['Qo']}, {S['Qr']}, {S['t1']}")
        a("s_waitcnt lgkmcnt(0)")
        a("v_lshlrev_b32 v84, 16, v72"); a("v_and_b32 v85, 0xffff0000, v72"); a("v_lshlrev_b32 v86, 16, v73"); a("v_and_b32 v87, 0xffff0000, v73")
        a("v_lshlrev_b32 v88, 16, v74"); a("v_and_b32 v89, 0xffff0000, v74"); a("v_lshlrev_b32 v90, 16, v75"); a("v_and_b32 v91, 0xffff0000, v75")
        a(f"v_subrev_u32 v76, {L_X}, {P['aXu']}"); a(f"v_subrev_u32 v76, {S['old896']}, v76")
        a(f"v_subrev_u32 v77, {L_X}, {P['aXu2']}"); a(f"v_subrev_u32 v77, {S['old896']}, v77")
        a("v_min_u32 v78, 0x378, v76"); a(f"v_add_u32 v78, {S['bn']}, v78")
        a("v_min_u32 v79, 0x378, v77"); a(f"v_add_u32 v79, {S['bn']}, v79")
        a("ds_read_b64 v[72:73], v78"); a("ds_read_b64 v[74:75], v79")
        a(f"s_cmp_lg_u32 {S['wave']}, 0")
        a(f"s_cbranch_scc1 L_nowq_{rho}")
        self.wq_preload()
        a.label(f"L_nowq_{rho}")
        a(f"s_waitcnt vmcnt({n4})")
        a.label(f"L_g2c_{rho}")
        self.stamp(11)
        for s in range(2):
            for rr in range(4):
                cc = '0' if rr == 0 else vr(64+4*s,4)
                a(f"v_mfma_f32_16x16x32_bf16 {vr(64+4*s,4)}, v[80:83], {vr(32+16*s+4*rr,4)}, {cc}")
        for i in range(8): a(f"v_add_f32 v{64+i}, v{64+i}, v{84+i}")
        a("v_add_f32 v92, v64, v65"); a("v_add_f32 v93, v66, v67"); a("v_add_f32 v94, v68, v69"); a("v_add_f32 v95, v70, v71")
        a("v_add_f32 v92, v92, v93"); a("v_add_f32 v94, v94, v95"); a("v_add_f32 v92, v92, v94")
        a("v_cmp_u_f32 vcc, v92, v92")
        a(f"s_cbranch_vccnz L_g2r_{rho}")
        a.label(f"L_g2ok_{rho}")
        a(f"s_mov_b32 {S['acc']}, 0")
        tl.label(f"L_g2r_{rho}")
        tl(f"s_cmp_lg_u32 {S['acc']}, 0"); tl(f"s_cbranch_scc1 L_g2ok_{rho}")
        tl(f"s_mov_b32 {S['cnt']}, 0")
        tl.label(f"L_g2rl_{rho}")
        self.g2_issue(tl); tl("s_waitcnt vmcnt(0)")
        self.exact_check(tl, 32, 64)
        tl(f"s_mov_b32 {S['acc']}, 1")
        tl(f"s_cbranch_vccz L_g2c_{rho}")
        tl(f"s_add_u32 {S['cnt']}, {S['cnt']}, 1"); tl(f"s_cmp_lt_u32 {S['cnt']}, {c.limit}")
        tl(f"s_cbranch_scc1 L_g2rl_{rho}")
        tl(f"s_branch L_g2c_{rho}")
        a("v_cvt_pk_bf16_f32 v64, v64, v65"); a("v_cvt_pk_bf16_f32 v65, v66, v67")
        a("v_cvt_pk_bf16_f32 v66, v68, v69"); a("v_cvt_pk_bf16_f32 v67, v70, v71")
        a("s_waitcnt lgkmcnt(0)")
        a(f"s_cmp_eq_u32 {S['odd']}, 0")
        a(f"s_cbranch_scc1 L_xw_{rho}")
        a(f"s_movk_i32 {S['t0']}, 896")
        a(f"v_cmp_gt_u32 vcc, {S['t0']}, v76")
        a(f"s_cmp_eq_u32 {S['wg']}, 0"); a(f"s_cselect_b32 {S['t1']}, 1, 0")
        a(f"s_cmp_ge_u32 {k}, 2"); a(f"s_cselect_b32 {S['t1']}, {S['t1']}, 0")
        a(f"s_cmp_eq_u32 {S['t1']}, 0")
        a(f"s_cbranch_scc1 L_noout_{rho}")
        a("s_and_b64 s[92:93], vcc, exec")
        a("s_mov_b32 s93, 0")
        a("s_mov_b64 exec, s[92:93]")
        a(f"buffer_store_dwordx2 v[64:65], v76, {srd(sOUT)}, {S['ob']} offen")
        a("s_mov_b64 exec, -1")
        a(f"s_movk_i32 {S['t0']}, 896")
        a(f"v_cmp_gt_u32 s[92:93], {S['t0']}, v77")
        a("s_mov_b32 s93, 0")
        a("s_mov_b64 exec, s[92:93]")
        a(f"buffer_store_dwordx2 v[66:67], v77, {srd(sOUT)}, {S['ob']} offen")
        a("s_mov_b64 exec, -1")
        a.label(f"L_noout_{rho}")
        a(f"s_movk_i32 {S['t0']}, 896")
        a(f"v_cmp_gt_u32 vcc, {S['t0']}, v76")
        a("v_cndmask_b32 v64, v64, v72, vcc"); a("v_cndmask_b32 v65, v65, v73, vcc")
        a(f"v_cmp_gt_u32 vcc, {S['t0']}, v77")
        a("v_cndmask_b32 v66, v66, v74, vcc"); a("v_cndmask_b32 v67, v67, v75, vcc")
        a.label(f"L_xw_{rho}")
        a(f"ds_write_b64 {P['aXu']}, v[64:65]")
        a(f"ds_write_b64 {P['aXu2']}, v[66:67]")
        self.stamp(12)
        if c.diag:
            a(f"s_mul_i32 {S['t0']}, {S['wg']}, {4*18*256}"); a(f"s_mul_i32 {S['t1']}, {S['wave']}, {18*256}")
            a(f"s_add_u32 {S['t0']}, {S['t0']}, {S['t1']}"); a(f"s_lshl_b32 {S['t1']}, {k}, 8"); a(f"s_add_u32 {S['t0']}, {S['t0']}, {S['t1']}")
            a(f"s_add_u32 {S['t0']}, {S['t0']}, {DIAGB}")
            a(f"v_subrev_u32 v92, {L_QS}, {P['aQSw']}"); a("v_and_b32 v92, 0x3ff, v92"); a("v_lshrrev_b32 v92, 2, v92")
            a(f"buffer_store_dword {P['vT']}, v92, {srd(sWS)}, {S['t0']} offen")
        a(f"s_mov_b32 {S['ring']}, {S['ringn']}")
        a(f"s_add_u32 {k}, {k}, 1")
        a(f"s_cmp_ge_u32 {k}, {c.nrounds}")
        a("s_cbranch_scc1 L_end")
        if rho == 2: a("s_branch L_top0")

    def build(self):
        a = self.a
        self.init()
        for rho in range(3): self.round(rho)
        a.label("L_end")
        a("s_endpgm")
        lines = a.lines + self.tail.lines
        return lines
    def _find(self, lab):
        return self.a.lines.index(lab + ':')

def header(cfg):
    ref = open('cdna_kernels/' + NAME + '.s.ref').read().split('\n')
    hdr = [l for l in ref if l.startswith('; ') and ('offset' in l or 'Kernarg' in l)]
    o = hdr[:]
    o.append(f"; @launch grid=(256,1,1) block=(256,1,1) lds={LDS_BYTES}")
    o.append('.amdgcn_target "amdgcn-amd-amdhsa--gfx950"')
    o.append('.text'); o.append(f'.globl {NAME}_kernel'); o.append('.p2align 8'); o.append(f'.type {NAME}_kernel,@function')
    o.append(f'{NAME}_kernel:')
    return o
def footer():
    return ['.section .rodata,"a"', '.p2align 6', f'.amdhsa_kernel {NAME}_kernel',
            '  .amdhsa_next_free_vgpr 512', '  .amdhsa_next_free_sgpr 102', '  .amdhsa_accum_offset 256',
            '  .amdhsa_group_segment_fixed_size 0', '  .amdhsa_kernarg_size 104', '  .amdhsa_user_sgpr_count 2',
            '  .amdhsa_user_sgpr_kernarg_segment_ptr 1', '  .amdhsa_system_sgpr_workgroup_id_x 1', '.end_amdhsa_kernel']

def generate(cfg):
    g = Gen(cfg)
    body = finalize(g.build())
    return '\n'.join(header(cfg) + body + footer()) + '\n'

if __name__ == '__main__':
    cfg = Cfg()
    out = 'cdna_kernels/' + NAME + '.s'
    args = sys.argv[1:]
    for x in args:
        if '=' in x:
            kk, vv = x.split('=')
            if kk == 'out': out = vv
            elif kk == 'diag': cfg.diag = bool(int(vv))
            else: setattr(cfg, kk, int(vv))
    open(out, 'w').write(generate(cfg))
    print('wrote', out)
```

```python
import sys, os
sys.path.insert(0, os.path.dirname(os.path.abspath(__file__)))
from asmlib import Asm, finalize, vr

NAME = 'interleave_layers__gqa_block_cached__gqa_block_cached__decode'

class Cfg:
    n1 = 3; n2 = 6
    o3 = 3
    q4 = 6
    p1 = 0
    diag = False
    limit = 200000
    nrounds = 18
    fast = 1
    hlimit = 400
    g2plain = 1
    fwave = 0

FL2  = 8192
MB   = 12288
QB   = MB + 256*128
LAMB = QB + 3*16384
YB   = LAMB + 3*4096
XSB  = YB + 18*28672
PB   = XSB + 19*2048
PSZ  = 524288
POISON_PER_WG = 4640
assert PB + PSZ <= 256*POISON_PER_WG
WS_USED = PB + 3*PSZ
DIAGB = 4*1024*1024
WS_RECORDS = 64*1024*1024

L_WQ = 0; L_WO = 32768; L_OC = 65536; L_QS = 81920; L_X0 = 90112; L_X = 98304; L_O2 = 101376; L_ST = 102400
LDS_BYTES = 102656

P = {}
for i, nme in enumerate(['vK','vV','vPw','vPg','vLg','vLw','vYw','vYg','vYg2','vQw','vQg',
                         'aQSw','aQr','aOCw','aSTw','aOCr','aSTr','aO2w','aO2r','aWOr','aWQr','aXr','aXu','aXu2',
                         'm0','m1','m2','m3','vT']):
    P[nme] = 'v%d' % (i+1)
MASK = [P['m0'],P['m1'],P['m2'],P['m3']]

sK, sV, sWS, sOUT, sTMP = 44, 48, 52, 56, 60
S = dict(k=64, wave=65, h=66, r=67, off0=68, off1=69, Qr=76, Qo=77, Qy=78, Lam=79, Y=80, Pq=81, P4=82, Pn=83,
         Pw=84, Lw=85, ypos=86, ring=87, cnt=88, acc=89, t0=90, t1=91, t2=92, t3=93, t4=94, t5=95, odd=70, old896=71,
         bn=72, ob=73, ts0=96, ts1=97, wg=74, ringn=75, fast=101,
         Qn=42, Ln=43, f2o=17, pi=26, XSo=24, XSw=25, isq=23, rh=27, tag0=14, tag1=15)
S = {k: 's%d' % v for k, v in S.items()}
def srd(b): return 's[%d:%d]' % (b, b+3)

CEXP = 0.09016844005556021
import struct
def f2u(x): return struct.unpack('<I', struct.pack('<f', x))[0]

def ureg(u, off, n=4):
    if u == 0: return vr(off, n, 'a')
    if u == 1: return vr(128+off, n, 'a')
    return vr(128+off, n, 'v')

KORD = [(t, kk) for t in range(2) for kk in range(8)]
VORD = [(t, i, hf) for t in range(2) for i in range(4) for hf in range(2)]
def kreg(u, t, kk): return ureg(u, (t*8+kk)*4)
def vreg(u, t, i, hf): return ureg(u, 64 + ((t*4+i)*2+hf)*4)

def stream_load(a, u, idx):
    if idx < 16:
        t, kk = KORD[idx]
        a(f"buffer_load_dwordx4 {kreg(u,t,kk)}, {P['vK']}, {srd(sK)}, {S['off1'] if t else S['off0']} offen offset:{kk*64} nt")
    else:
        t, i, hf = VORD[idx-16]
        a(f"buffer_load_dwordx4 {vreg(u,t,i,hf)}, {P['vV']}, {srd(sV)}, {S['off1'] if t else S['off0']} offen offset:{i*512+hf*256} nt")

class Gen:
    def __init__(self, cfg):
        self.c = cfg
        self.a = Asm()
        self.tail = Asm()
        self.stamp_i = 0

    def stamp(self, idx):
        if not self.c.diag: return
        a = self.a
        a(f"s_memrealtime s[{96}:{97}]")
        a("s_waitcnt lgkmcnt(0)")
        a(f"v_writelane_b32 {P['vT']}, s96, {idx}")

    def init(self):
        a = self.a; c = self.c
        a(f"s_cmp_ge_u32 s2, 256")
        a(f"s_cbranch_scc1 L_end")
        a("s_load_dwordx16 s[16:31], s[0:1], 0")
        a("s_load_dwordx8 s[32:39], s[0:1], 64")
        a("s_load_dwordx2 s[40:41], s[0:1], 96")
        a(f"s_mov_b32 {S['wg']}, s2")
        a(f"s_and_b32 {S['h']}, s2, 7")
        a(f"s_lshr_b32 {S['r']}, s2, 3")
        a("v_and_b32 v32, 63, v0")
        a("v_lshrrev_b32 v35, 6, v0")
        a("v_and_b32 v33, 15, v32")
        a("v_lshrrev_b32 v34, 4, v32")
        a(f"v_readfirstlane_b32 {S['wave']}, v35")
        if c.diag:
            a(f"v_mov_b32 {P['vT']}, 0"); a("s_mov_b32 s98, 0"); a("s_mov_b32 s99, 0"); a("s_mov_b32 s100, 0")
        self.stamp(20)
        a(f"s_lshl_b32 {S['t0']}, {S['h']}, 21")
        a(f"s_lshl_b32 {S['t1']}, {S['r']}, 16")
        a(f"s_add_u32 {S['t0']}, {S['t0']}, {S['t1']}")
        a(f"s_lshl_b32 {S['t1']}, {S['wave']}, 14")
        a(f"s_add_u32 {S['t0']}, {S['t0']}, {S['t1']}")
        a("v_lshlrev_b32 v36, 9, v33")
        a("v_lshl_add_u32 v36, v34, 4, v36")
        a(f"v_add_u32 {P['vK']}, {S['t0']}, v36")
        a("v_lshlrev_b32 v36, 11, v34")
        a("v_lshl_add_u32 v36, v33, 4, v36")
        a(f"v_add_u32 {P['vV']}, {S['t0']}, v36")
        a(f"s_mov_b32 {S['off0']}, 0")
        a(f"s_mov_b32 {S['off1']}, 8192")
        a("s_waitcnt lgkmcnt(0)")
        for b, lo in ((sK, 18), (sV, 20), (sWS, 40), (sOUT, 36)):
            a(f"s_mov_b32 s{b}, s{lo}"); a(f"s_mov_b32 s{b+1}, s{lo+1}"); a(f"s_mov_b32 s{b+3}, 0x00020000")
        a(f"s_mov_b32 s{sK+2}, 0x08000000"); a(f"s_mov_b32 s{sV+2}, 0x08000000")
        a(f"s_mov_b32 s{sWS+2}, {WS_RECORDS}"); a(f"s_mov_b32 s{sOUT+2}, 7168")
        a(f"s_mul_i32 {S['t1']}, s2, {POISON_PER_WG}")
        a("v_lshlrev_b32 v36, 4, v0")
        a(f"v_add_u32 v36, {S['t1']}, v36")
        a("v_mov_b32 v40, -1"); a("v_mov_b32 v41, -1"); a("v_mov_b32 v42, -1"); a("v_mov_b32 v43, -1")
        a(f"buffer_store_dwordx4 v[40:43], v36, {srd(sWS)}, 0 offen sc1")
        a("v_add_u32 v37, 4096, v36")
        a(f"v_cmp_gt_u32 vcc, {(POISON_PER_WG-4096)//16}, v0")
        a("v_mov_b32 v38, 0x7fff0000")
        a("v_cndmask_b32 v37, v38, v37, vcc")
        a(f"buffer_store_dwordx4 v[40:43], v37, {srd(sWS)}, 0 offen sc1")
        a(f"s_lshl_b32 {S['t1']}, s2, 7"); a(f"s_add_u32 {S['t1']}, {S['t1']}, {MB}")
        a(f"v_mov_b32 v37, {S['t1']}")
        a("s_mov_b64 exec, 1")
        a(f"buffer_store_dword v40, v37, {srd(sWS)}, 0 offen sc1")
        a("s_mov_b64 exec, -1")
        a(f"s_and_b32 {S['pi']}, {S['r']}, 1"); a(f"s_lshr_b32 {S['rh']}, {S['r']}, 1")
        a("v_lshrrev_b32 v44, 1, v32")
        a("v_lshlrev_b32 v44, 13, v44")
        a("v_and_b32 v45, 1, v32")
        a("v_lshl_add_u32 v44, v45, 4, v44")
        a(f"s_lshl_b32 {S['t1']}, {S['h']}, 10")
        a(f"s_lshl_b32 {S['t2']}, {S['rh']}, 6")
        a(f"s_add_u32 {S['t1']}, {S['t1']}, {S['t2']}")
        a(f"s_lshl_b32 {S['t2']}, {S['wave']}, 18")
        a(f"s_add_u32 {S['t1']}, {S['t1']}, {S['t2']}")
        a(f"v_add_u32 v44, {S['t1']}, v44")
        def tmp_srd(lo, nrec, alt=None):
            if alt is None:
                a(f"s_mov_b32 s{sTMP}, s{lo}"); a(f"s_mov_b32 s{sTMP+1}, s{lo+1}")
            else:
                a(f"s_cmp_lg_u32 {S['pi']}, 0")
                a(f"s_cselect_b32 s{sTMP}, s{alt}, s{lo}"); a(f"s_cselect_b32 s{sTMP+1}, s{alt+1}, s{lo+1}")
            a(f"s_mov_b32 s{sTMP+2}, {nrec}"); a(f"s_mov_b32 s{sTMP+3}, 0x00020000")
        a(f"s_mov_b32 {S['t2']}, 0"); a(f"s_mov_b32 {S['t3']}, {1<<20}"); a(f"s_mov_b32 {S['t4']}, {2<<20}"); a(f"s_mov_b32 {S['t5']}, {3<<20}")
        tt = [S['t2'], S['t3'], S['t4'], S['t5']]
        tmp_srd(22, 3670016, 32)
        for i in range(4):
            a(f"buffer_load_dwordx4 {vr(48+4*i,4)}, v44, {srd(sTMP)}, {tt[i]} offen")
        for i in range(4):
            a(f"buffer_load_dwordx4 {vr(72+4*i,4)}, v44, {srd(sTMP)}, {tt[i]} offen offset:32")
        tmp_srd(16, 7168)
        a("v_lshlrev_b32 v46, 4, v0")
        a(f"buffer_load_dwordx4 v[64:67], v46, {srd(sTMP)}, 0 offen")
        a("v_add_u32 v47, 4096, v46")
        a(f"buffer_load_dwordx4 v[68:71], v47, {srd(sTMP)}, 0 offen")
        for i in range(8): stream_load(a, 0, i)
        self.stamp(21)
        self.init_addrs()
        a(f"s_waitcnt vmcnt({10+8})")
        a("s_barrier")
        self.stamp(22)
        a(f"s_cmp_lg_u32 {S['wave']}, 0")
        a("s_cbranch_scc1 L_noatomic")
        a(f"s_mov_b32 s4, s38"); a(f"s_mov_b32 s5, s39"); a(f"s_mov_b32 s6, 256"); a(f"s_mov_b32 s7, 0x00020000")
        a(f"s_lshl_b32 {S['t0']}, {S['h']}, 5")
        a(f"v_mov_b32 v36, {S['t0']}")
        a(f"s_getreg_b32 {S['t1']}, hwreg(HW_REG_XCC_ID)")
        a(f"s_and_b32 {S['t1']}, {S['t1']}, 15")
        a(f"s_mul_i32 {S['t0']}, {S['t1']}, {S['t1']}")
        a(f"s_lshl_b32 {S['t0']}, {S['t0']}, 18"); a(f"s_lshl_b32 {S['t1']}, {S['t1']}, 8")
        a(f"s_add_u32 {S['t1']}, {S['t1']}, {S['t0']}"); a(f"s_add_u32 {S['t1']}, {S['t1']}, 1")
        a(f"v_mov_b32 v37, {S['t1']}")
        a("s_mov_b64 exec, 1")
        a(f"buffer_atomic_add v37, v36, s[4:7], 0 offen sc1")
        a("s_mov_b64 exec, -1")
        a.label("L_noatomic")
        for i in range(8, 16): stream_load(a, 0, i)
        a(f"s_cmp_lg_u32 {S['wg']}, 0"); a("s_cbranch_scc1 L_nofin")
        a(f"s_cmp_lg_u32 {S['wave']}, 1"); a("s_cbranch_scc1 L_nofin")
        a(f"s_mov_b32 {S['cnt']}, 0")
        a.label("L_fpoll")
        for hh in range(8):
            a(f"s_load_dword s{4+hh}, s[38:39], {hh*32} glc")
        a("s_waitcnt lgkmcnt(0)")
        a("s_and_b32 s12, s4, s5"); a("s_and_b32 s13, s6, s7"); a("s_and_b32 s14, s8, s9"); a("s_and_b32 s15, s10, s11")
        a("s_and_b32 s12, s12, s13"); a("s_and_b32 s14, s14, s15"); a("s_and_b32 s12, s12, s14")
        a("s_bitcmp1_b32 s12, 5")
        a("s_cbranch_scc1 L_fdone")
        a(f"s_add_u32 {S['cnt']}, {S['cnt']}, 1")
        a(f"s_cmp_lt_u32 {S['cnt']}, {c.limit}")
        a("s_cbranch_scc1 L_fpoll")
        a.label("L_fdone")
        a("s_mov_b32 s12, 0x100")
        for hh in range(8):
            a(f"s_lshr_b32 s13, s{4+hh}, 8"); a("s_and_b32 s13, s13, 0x3ff"); a("s_mul_i32 s13, s13, s13")
            a(f"s_lshr_b32 s14, s{4+hh}, 18"); a("s_lshl_b32 s14, s14, 5")
            a("s_cmp_eq_u32 s13, s14"); a(f"s_cselect_b32 s13, {(1<<hh) if c.fast else 0}, 0"); a("s_or_b32 s12, s12, s13")
        a("v_mov_b32 v37, s12")
        a("v_lshlrev_b32 v36, 7, v32")
        for i in range(4):
            a(f"v_add_u32 v38, {MB + i*64*128}, v36")
            a(f"buffer_store_dword v37, v38, {srd(sWS)}, 0 offen sc1")
        a.label("L_nofin")
        a(f"s_and_b32 {S['t0']}, {S['rh']}, 1")
        a(f"s_lshl_b32 {S['t1']}, {S['h']}, 1")
        a(f"s_add_u32 {S['t1']}, {S['t1']}, {S['t0']}")
        a(f"s_lshl_b32 {S['t1']}, {S['t1']}, 8")
        a(f"s_lshr_b32 {S['t0']}, {S['wave']}, 1")
        a(f"s_lshl_b32 {S['t0']}, {S['t0']}, 7")
        a(f"s_add_u32 {S['t1']}, {S['t1']}, {S['t0']}")
        a(f"s_mul_i32 {S['t1']}, {S['t1']}, 896")
        a(f"s_lshr_b32 {S['t0']}, {S['rh']}, 1")
        a(f"s_mul_i32 {S['t0']}, {S['t0']}, 112")
        a(f"s_add_u32 {S['t1']}, {S['t1']}, {S['t0']}")
        a(f"s_and_b32 {S['t0']}, {S['wave']}, 1")
        a(f"s_lshl_b32 {S['t0']}, {S['t0']}, 5")
        a(f"s_add_u32 {S['t1']}, {S['t1']}, {S['t0']}")
        a("v_lshrrev_b32 v45, 1, v32")
        a(f"s_movk_i32 {S['t0']}, 896")
        a(f"v_mul_lo_u32 v45, v45, {S['t0']}")
        a("v_and_b32 v46, 1, v32")
        a("v_lshl_add_u32 v45, v46, 4, v45")
        a(f"v_add_u32 v45, {S['t1']}, v45")
        a(f"s_mov_b32 {S['t2']}, 0"); a(f"s_mov_b32 {S['t3']}, 28672"); a(f"s_mov_b32 {S['t4']}, {2*28672}"); a(f"s_mov_b32 {S['t5']}, {3*28672}")
        tmp_srd(24, 3670016, 34)
        for i in range(4):
            a(f"buffer_load_dwordx4 {vr(88+4*i,4)}, v45, {srd(sTMP)}, {tt[i]} offen")
        for i in range(4):
            a(f"buffer_load_dwordx4 {vr(104+4*i,4)}, v45, {srd(sTMP)}, {tt[i]} offen offset:64")
        tmp_srd(16, 7168)
        nV0 = 16 - c.n1
        self.nV0 = nV0
        for i in range(128, 256): a(f"v_accvgpr_write_b32 a{i}, 0")
        for i in range(128, 256): a(f"v_mov_b32 v{i}, 0")
        self.stamp(23)
        a(f"s_waitcnt vmcnt({16+8})")
        a("v_lshlrev_b32 v36, 4, v32")
        a(f"s_lshl_b32 {S['t0']}, {S['wave']}, 10")
        a(f"v_add_u32 v36, {S['t0']}, v36")
        for i in range(4):
            a(f"ds_write_b128 v36, {vr(48+4*i,4)} offset:{L_WQ + i*4096}")
        for i in range(4):
            a(f"ds_write_b128 v36, {vr(72+4*i,4)} offset:{L_WQ + 16384 + i*4096}")
        a("v_lshlrev_b32 v46, 4, v0")
        a(f"v_add_u32 v47, {L_X0}, v46")
        a("ds_write_b128 v47, v[64:67] offset:0")
        a("ds_write_b128 v47, v[68:71] offset:4096")
        a(f"v_add_u32 v47, {L_X}, v46")
        a("v_cmp_gt_u32 vcc, 112, v0")
        a("s_and_saveexec_b64 s[90:91], vcc")
        a("ds_write_b128 v47, v[64:67]")
        a("s_mov_b64 exec, -1")
        a("v_mov_b32 v64, 0x3f803f80"); a("v_mov_b32 v65, v64"); a("v_mov_b32 v66, v64"); a("v_mov_b32 v67, v64")
        a("v_subrev_u32 v46, 192, v0")
        a("v_cmp_gt_u32 vcc, 56, v46")
        a("v_lshlrev_b32 v46, 4, v46")
        a(f"v_add_u32 v47, {L_X+1792}, v46")
        a("s_and_saveexec_b64 s[90:91], vcc")
        a("s_cbranch_execz L_noones")
        a("ds_write_b128 v47, v[64:67]")
        a.label("L_noones")
        a("s_mov_b64 exec, -1")
        for i in range(16, 32-c.n1): stream_load(a, 0, i)
        self.stamp(24)
        a(f"s_waitcnt vmcnt({nV0})")
        a(f"s_and_b32 {S['t0']}, {S['wave']}, 1"); a(f"s_lshl_b32 {S['t0']}, {S['t0']}, 13")
        a(f"s_lshr_b32 {S['t1']}, {S['wave']}, 1"); a(f"s_lshl_b32 {S['t1']}, {S['t1']}, 12")
        a(f"s_add_u32 {S['t0']}, {S['t0']}, {S['t1']}")
        a("v_lshlrev_b32 v37, 4, v32")
        a(f"v_add_u32 v37, {S['t0']}, v37")
        for i in range(4):
            a(f"ds_write_b128 v37, {vr(88+4*i,4)} offset:{L_WO + i*1024}")
        for i in range(4):
            a(f"ds_write_b128 v37, {vr(104+4*i,4)} offset:{L_WO + 16384 + i*1024}")
        a(f"s_mov_b32 {S['acc']}, 0")
        a(f"s_mov_b32 {S['XSo']}, 0")
        a(f"s_mov_b32 {S['tag0']}, 0x01010101"); a(f"s_mov_b32 {S['tag1']}, 0x01010101")
        a(f"s_lshl_b32 {S['t0']}, {S['rh']}, 7"); a(f"s_add_u32 {S['f2o']}, {S['t0']}, {FL2}")
        a("s_waitcnt lgkmcnt(0)")
        self.stamp(25)
        a(f"s_cmp_lg_u32 {S['wave']}, 0")
        a("s_cbranch_scc1 L_polled")
        a(f"s_mov_b32 {S['cnt']}, 0")
        a(f"s_lshl_b32 {S['t0']}, {S['wg']}, 7"); a(f"s_add_u32 {S['t0']}, {S['t0']}, {MB}")
        a.label("L_poll")
        a(f"s_load_dword s4, s[40:41], {S['t0']} glc")
        a("s_waitcnt lgkmcnt(0)")
        a("s_cmp_lg_u32 s4, -1")
        a("s_cbranch_scc1 L_pollx")
        a(f"s_add_u32 {S['cnt']}, {S['cnt']}, 1")
        a(f"s_cmp_lt_u32 {S['cnt']}, {c.limit}")
        a("s_cbranch_scc1 L_poll")
        a("s_mov_b32 s4, 0")
        a.label("L_pollx")
        a(f"s_lshr_b32 s4, s4, {S['h']}"); a("s_and_b32 s4, s4, 1")
        a("v_mov_b32 v36, s4"); a(f"v_mov_b32 v37, {L_ST+128}")
        a("ds_write_b32 v37, v36")
        a("s_waitcnt lgkmcnt(0)")
        a.label("L_polled")
        a("s_barrier")
        a(f"v_mov_b32 v37, {L_ST+128}")
        a("ds_read_b32 v36, v37")
        a("s_waitcnt lgkmcnt(0)")
        a(f"v_readfirstlane_b32 {S['fast']}, v36")
        self.stamp(26)
        a(f"s_mov_b32 {S['k']}, 0")
        a(f"s_cmp_lg_u32 {S['pi']}, 0")
        a("s_cbranch_scc1 L_top0")
        a(f"s_mov_b32 {S['k']}, -1")
        a(f"s_cmp_gt_u32 {S['wave']}, 1")
        a("s_cbranch_scc1 L_qp_2")
        self.wq_preload()
        a("s_branch L_qp_2")

    def init_addrs(self):
        a = self.a
        t0, t1, t2, t3 = S['t0'], S['t1'], S['t2'], S['t3']
        h, r, w = S['h'], S['r'], S['wave']
        a(f"s_and_b32 s4, {w}, 1")
        a(f"s_lshr_b32 s5, {w}, 1")
        a(f"s_and_b32 s6, {S['rh']}, 1")
        a(f"s_lshr_b32 s7, {S['rh']}, 1")
        a("v_lshlrev_b32 v36, 4, v32")
        a(f"s_lshl_b32 {t0}, {h}, 16"); a(f"s_lshl_b32 {t1}, s4, 14"); a(f"s_add_u32 {t0}, {t0}, {t1}")
        a(f"s_lshl_b32 {t1}, {r}, 8"); a(f"s_add_u32 {t0}, {t0}, {t1}")
        a("v_lshrrev_b32 v37, 5, v32"); a("v_lshlrev_b32 v37, 13, v37")
        a("v_and_b32 v38, 31, v32"); a("v_lshl_add_u32 v37, v38, 3, v37")
        a(f"v_add_u32 {P['vPw']}, {t0}, v37")
        a(f"s_lshl_b32 {t0}, {h}, 16"); a(f"s_lshl_b32 {t1}, s5, 15"); a(f"s_add_u32 {t0}, {t0}, {t1}")
        a(f"s_lshl_b32 {t1}, s6, 14"); a(f"s_add_u32 {t0}, {t0}, {t1}")
        a(f"s_lshl_b32 {t1}, s4, 13"); a(f"s_add_u32 {t0}, {t0}, {t1}")
        a(f"v_add_u32 {P['vPg']}, {t0}, v36")
        a(f"s_lshl_b32 {t0}, {h}, 9"); a(f"s_lshl_b32 {t1}, s5, 8"); a(f"s_add_u32 {t0}, {t0}, {t1}")
        a(f"s_lshl_b32 {t1}, s6, 7"); a(f"s_add_u32 {t0}, {t0}, {t1}")
        a("v_lshlrev_b32 v37, 5, v34")
        a(f"v_add_u32 {P['vLg']}, {t0}, v37")
        a(f"s_lshl_b32 {t0}, {h}, 9"); a(f"s_lshl_b32 {t1}, s4, 7"); a(f"s_add_u32 {t0}, {t0}, {t1}")
        a(f"s_and_b32 {t1}, {r}, 3"); a(f"s_lshl_b32 {t1}, {t1}, 5"); a(f"s_add_u32 {t0}, {t0}, {t1}")
        a(f"s_lshr_b32 {t1}, {r}, 2"); a(f"s_lshl_b32 {t1}, {t1}, 2"); a(f"s_add_u32 {t0}, {t0}, {t1}")
        a(f"v_mov_b32 {P['vLw']}, {t0}")
        a(f"s_mul_i32 {t0}, s7, 56"); a(f"s_lshl_b32 {t1}, {w}, 4"); a(f"s_add_u32 {t0}, {t0}, {t1}")
        a("v_and_b32 v37, 1, v33"); a(f"s_movk_i32 {t1}, 448"); a(f"v_mul_lo_u32 v37, v37, {t1}")
        a("v_lshl_add_u32 v37, v34, 2, v37"); a(f"v_add_u32 v37, {t0}, v37")
        a("v_lshrrev_b32 v38, 7, v37"); a("v_lshlrev_b32 v38, 12, v38")
        a("v_and_b32 v37, 127, v37"); a("v_lshl_add_u32 v37, v37, 1, v38")
        a(f"s_lshl_b32 {t0}, {h}, 1"); a(f"s_add_u32 {t0}, {t0}, s6"); a(f"s_lshl_b32 {t0}, {t0}, 8")
        a(f"v_add_u32 {P['vYw']}, {t0}, v37")
        a(f"s_lshl_b32 {t0}, {w}, 12"); a(f"v_add_u32 {P['vYg']}, {t0}, v36")
        a(f"s_add_u32 {t1}, {w}, 4"); a(f"s_cmp_eq_u32 {w}, 3"); a(f"s_cselect_b32 s8, 3, {t1}")
        a(f"s_lshl_b32 {t0}, s8, 12"); a(f"v_add_u32 {P['vYg2']}, {t0}, v36")
        a(f"s_lshl_b32 {t0}, {h}, 10"); a(f"s_lshl_b32 {t1}, {S['rh']}, 6"); a(f"s_add_u32 {t0}, {t0}, {t1}")
        a(f"s_lshl_b32 {t1}, s4, 5"); a(f"s_add_u32 {t0}, {t0}, {t1}")
        a("v_and_b32 v37, 1, v33"); a("v_lshlrev_b32 v37, 13, v37"); a("v_lshl_add_u32 v37, v34, 3, v37")
        a(f"v_add_u32 {P['vQw']}, {t0}, v37")
        a(f"s_lshl_b32 {t0}, {h}, 10"); a(f"v_add_u32 {P['vQg']}, {t0}, v36")
        a(f"s_lshl_b32 {t0}, {w}, 11"); a(f"s_add_u32 {t0}, {t0}, {L_QS}")
        a(f"v_add_u32 {P['aQSw']}, {t0}, v36")
        a("v_lshrrev_b32 v37, 3, v33"); a("v_lshlrev_b32 v37, 9, v37"); a("v_lshl_add_u32 v37, v34, 4, v37")
        a(f"v_add_u32 {P['aQr']}, {t0}, v37")
        a(f"s_lshl_b32 {t0}, {w}, 12"); a(f"s_add_u32 {t0}, {t0}, {L_OC}")
        a("v_lshrrev_b32 v37, 1, v34"); a("v_lshlrev_b32 v37, 10, v37"); a("v_lshl_add_u32 v37, v33, 5, v37")
        a("v_and_b32 v38, 1, v34"); a("v_lshl_add_u32 v37, v38, 4, v37")
        a(f"v_add_u32 {P['aOCw']}, {t0}, v37")
        a(f"s_lshl_b32 {t0}, {w}, 3"); a(f"s_add_u32 {t0}, {t0}, {L_ST}")
        a("v_lshrrev_b32 v37, 3, v33"); a("v_lshlrev_b32 v37, 5, v37")
        a(f"v_add_u32 {P['aSTw']}, {t0}, v37")
        a(f"s_lshl_b32 {t0}, {w}, 10"); a(f"s_add_u32 {t0}, {t0}, {L_OC}")
        a(f"v_add_u32 {P['aOCr']}, {t0}, v36")
        a(f"s_lshl_b32 {t0}, {w}, 5"); a(f"s_add_u32 {t0}, {t0}, {L_ST}")
        a(f"v_mov_b32 {P['aSTr']}, {t0}")
        a(f"s_lshl_b32 {t0}, s5, 9"); a(f"s_lshl_b32 {t1}, s4, 8"); a(f"s_add_u32 {t0}, {t0}, {t1}"); a(f"s_add_u32 {t0}, {t0}, {L_O2}")
        a("v_and_b32 v38, 1, v34"); a("v_lshlrev_b32 v37, 4, v33"); a("v_lshl_add_u32 v39, v38, 3, v37")
        a(f"v_add_u32 {P['aO2w']}, {t0}, v39")
        a(f"s_lshl_b32 {t0}, {w}, 8"); a(f"s_add_u32 {t0}, {t0}, {L_X}"); a(f"v_add_u32 {P['aXu']}, {t0}, v39")
        a(f"s_lshl_b32 {t0}, s8, 8"); a(f"s_add_u32 {t0}, {t0}, {L_X}"); a(f"v_add_u32 {P['aXu2']}, {t0}, v39")
        a("v_and_b32 v37, 1, v33"); a("v_lshlrev_b32 v37, 9, v37"); a("v_lshl_add_u32 v37, v34, 4, v37")
        a(f"v_add_u32 {P['aO2r']}, {L_O2}, v37")
        a("v_lshlrev_b32 v37, 8, v34"); a("v_lshl_add_u32 v37, v33, 3, v37")
        a(f"s_lshl_b32 {t0}, s4, 14"); a(f"s_add_u32 {t0}, {t0}, {L_WQ}")
        a(f"v_add_u32 {P['aWQr']}, {t0}, v37")
        a(f"s_lshl_b32 {t0}, {w}, 13"); a(f"s_add_u32 {t0}, {t0}, {L_WO}")
        a(f"v_add_u32 {P['aWOr']}, {t0}, v37")
        a("v_and_b32 v37, 3, v33"); a("v_min_u32 v37, 2, v37"); a(f"s_movk_i32 {t1}, 896"); a(f"v_mul_lo_u32 v37, v37, {t1}")
        a("v_lshl_add_u32 v37, v34, 4, v37"); a(f"v_add_u32 {P['aXr']}, {L_X}, v37")
        a("v_and_b32 v37, 1, v33"); a("v_cmp_eq_u32 vcc, 1, v37")
        a("v_mov_b32 v38, 0xffff"); a("v_mov_b32 v39, 0xffff0000"); a("v_cndmask_b32 v38, v38, v39, vcc")
        a("v_lshrrev_b32 v37, 1, v33"); a("v_and_b32 v37, 3, v37")
        for rr in range(4):
            a(f"v_cmp_eq_u32 vcc, {rr}, v37"); a(f"v_cndmask_b32 {MASK[rr]}, 0, v38, vcc")
        pass

    def gstore(self, a, text, tag):
        L = [text] if isinstance(text, str) else list(text)
        slow = [(x + " sc1") if x.startswith('buffer_store') else x for x in L]
        if not self.c.fast:
            for x in slow: a(x)
            return
        self.uid = getattr(self, 'uid', 0) + 1
        u = self.uid
        a(f"s_cmp_lg_u32 {S['fast']}, 0")
        a(f"s_cbranch_scc0 L_gs{u}")
        for x in L: a(x)
        a.label(f"L_gsb{u}")
        self.tail.label(f"L_gs{u}")
        for x in slow: self.tail(x)
        self.tail(f"s_branch L_gsb{u}")

    def poll(self, a, name, off, didx):
        c = self.c
        a(f"s_mov_b32 {S['cnt']}, 0")
        a.label(f"L_hp_{name}")
        a(f"s_load_dwordx8 s[4:11], s[40:41], {off} glc")
        a("s_waitcnt lgkmcnt(0)")
        for i in range(4):
            a(f"s_xor_b64 s[{4+2*i}:{5+2*i}], s[{4+2*i}:{5+2*i}], s[14:15]")
        a("s_or_b64 s[4:5], s[4:5], s[6:7]"); a("s_or_b64 s[8:9], s[8:9], s[10:11]"); a("s_or_b64 s[4:5], s[4:5], s[8:9]")
        a(f"s_cbranch_scc0 L_hpx_{name}")
        a(f"s_add_u32 {S['cnt']}, {S['cnt']}, 1")
        a(f"s_cmp_lt_u32 {S['cnt']}, {c.hlimit}")
        a(f"s_cbranch_scc1 L_hp_{name}")
        a.label(f"L_hpx_{name}")
        if c.diag: a(f"v_writelane_b32 {P['vT']}, {S['cnt']}, {didx}")

    def wq_preload(self):
        a = self.a
        for kk in range(8):
            a(f"ds_read_b64_tr_b16 {vr(96+4*kk,2)}, {P['aWQr']} offset:{kk*1024}")
            a(f"ds_read_b64_tr_b16 {vr(98+4*kk,2)}, {P['aWQr']} offset:{kk*1024+128}")
            if kk == 5: a("s_waitcnt lgkmcnt(6)")

    def qproj(self, rho):
        a = self.a
        Bs = [32+4*i for i in range(14)]
        acc, gr = 92, 88
        for kk in range(14):
            a(f"ds_read_b128 {vr(Bs[kk],4)}, {P['aXr']} offset:{kk*64}")
        a("s_waitcnt lgkmcnt(7)")
        for kk in range(7):
            c0 = '0' if kk == 0 else vr(acc,4); g0 = '0' if kk == 0 else vr(gr,4)
            a(f"v_mfma_f32_16x16x32_bf16 {vr(acc,4)}, {vr(96+4*kk,4)}, {vr(Bs[kk],4)}, {c0}")
            a(f"v_mfma_f32_16x16x32_bf16 {vr(gr,4)}, {vr(Bs[kk],4)}, {vr(Bs[kk],4)}, {g0}")
            if kk < 6:
                a(f"ds_read_b64_tr_b16 {vr(96+4*kk,2)}, {P['aWQr']} offset:{(8+kk)*1024}")
                a(f"ds_read_b64_tr_b16 {vr(98+4*kk,2)}, {P['aWQr']} offset:{(8+kk)*1024+128}")
            if kk == 3: a("s_waitcnt lgkmcnt(8)")
        for kk in range(7, 14):
            if kk >= 8: a(f"s_waitcnt lgkmcnt({2*(13-kk)})")
            wa = 96+4*7 if kk == 7 else 96+4*(kk-8)
            a(f"v_mfma_f32_16x16x32_bf16 {vr(acc,4)}, {vr(wa,4)}, {vr(Bs[kk],4)}, {vr(acc,4)}")
            a(f"v_mfma_f32_16x16x32_bf16 {vr(gr,4)}, {vr(Bs[kk],4)}, {vr(Bs[kk],4)}, {vr(gr,4)}")
        a("v_and_b32 v32, 1, v0")
        a("v_cmp_eq_u32 vcc, 1, v32")
        a(f"v_mov_b32 v34, {hex(f2u(1.0/448))}")
        a(f"v_cndmask_b32 v33, v{gr}, v{gr+1}, vcc")
        a(f"v_mul_f32 v35, v{gr+2}, v34")
        a("v_mul_f32 v33, v33, v34")
        a("v_fma_f32 v33, -v35, v35, v33")
        a("v_max_f32 v33, 0, v33")
        a(f"v_add_f32 v33, {hex(f2u(1e-5))}, v33")
        a("v_rsq_f32 v33, v33")
        a("v_sub_f32 v35, 0, v35")
        for i in range(4):
            a(f"v_fmac_f32_dpp v{acc+i}, v{acc+i}, v35 row_shl:2 row_mask:0xf bank_mask:0xf")
        for i in range(4):
            a(f"v_mul_f32 v{acc+i}, v{acc+i}, v33")
        a("v_mov_b32 v40, -1"); a("v_mov_b32 v41, -1")
        a(f"v_cvt_pk_bf16_f32 v36, v{acc}, v{acc+1}")
        a(f"v_cvt_pk_bf16_f32 v37, v{acc+2}, v{acc+3}")
        a("v_min_u32 v36, -2, v36"); a("v_min_u32 v37, -2, v37")
        a("s_mov_b32 exec_lo, 0x00030003"); a("s_mov_b32 exec_hi, 0x00030003")
        L = [f"buffer_store_dwordx2 v[36:37], {P['vQw']}, {srd(sWS)}, {S['Qr']} offen"]
        L += [f"buffer_store_dwordx2 v[40:41], {P['vQw']}, {srd(sWS)}, {S['Qn']} offen"]
        self.gstore(a, L, 'q')
        a("s_mov_b64 exec, -1")

    def g3_issue(self, a):
        a(f"buffer_load_dwordx4 v[112:115], {P['vQg']}, {srd(sWS)}, {S['Qo']} offen sc1")
        a(f"buffer_load_dwordx4 v[116:119], {P['vQg']}, {srd(sWS)}, {S['Qy']} offen sc1")
    def g3_check(self, a):
        a("v_max3_u32 v120, v112, v113, v114")
        a("v_max3_u32 v121, v115, v116, v117")
        a("v_max3_u32 v120, v120, v118, v119")
        a("v_max_u32 v120, v120, v121")
        a("v_cmp_eq_u32 vcc, -1, v120")

    def g1_issue(self, a, P_=True, L_=True):
        if P_:
            for ld in range(8):
                a(f"buffer_load_dwordx4 {vr(32+4*ld,4)}, {P['vPg']}, {srd(sWS)}, {S['Pq'] if ld < 4 else S['P4']} offen offset:{(ld%4)*1024} sc1")
        if L_:
            a(f"buffer_load_dwordx4 v[64:67], {P['vLg']}, {srd(sWS)}, {S['Lam']} offen sc1")
            a(f"buffer_load_dwordx4 v[68:71], {P['vLg']}, {srd(sWS)}, {S['Lam']} offen offset:16 sc1")
    def g2_issue(self, a, first=False):
        mod = "" if (first and self.c.g2plain) else " sc1"
        a(f"v_subrev_u32 v92, {L_X}, {P['aXu']}"); a(f"v_subrev_u32 v93, {L_X}, {P['aXu2']}")
        for s in range(2):
            for rho in range(4):
                a(f"buffer_load_dwordx4 {vr(32+16*s+4*rho,4)}, {P['vYg2'] if s else P['vYg']}, {srd(sWS)}, {S['Y']} offen offset:{rho*1024}{mod}")
        a(f"buffer_load_dwordx2 v[84:85], v92, {srd(sTMP)}, {S['XSo']} offen{mod}")
        a(f"buffer_load_dwordx2 v[88:89], v93, {srd(sTMP)}, {S['XSo']} offen{mod}")
    def exact_check(self, a, regs):
        regs = list(regs)
        a(f"v_max3_u32 v79, v{regs[0]}, v{regs[1]}, v{regs[2]}")
        i = 3
        while i < len(regs):
            if i+1 < len(regs):
                a(f"v_max3_u32 v79, v79, v{regs[i]}, v{regs[i+1]}"); i += 2
            else:
                a(f"v_max_u32 v79, v79, v{regs[i]}"); i += 1
        a("v_cmp_eq_u32 vcc, -1, v79")

    def xrow_reduce(self, a, reg, tmp, op):
        a(f"v_mov_b32 v{tmp}, v{reg}")
        a(f"v_permlane16_swap_b32 v{tmp}, v{reg}")
        a(f"{op} v{reg}, v{reg}, v{tmp}")
        a(f"v_mov_b32 v{tmp}, v{reg}")
        a(f"v_permlane32_swap_b32 v{tmp}, v{reg}")
        a(f"{op} v{reg}, v{reg}, v{tmp}")

    def round(self, rho):
        a = self.a; c = self.c; tl = self.tail
        Uy = rho; Uo = (rho+1) % 3
        n1, n2 = c.n1, c.n2
        o3 = c.o3; o4 = 32 - n1 - n2 - c.p1 - o3
        q4 = c.q4; q3 = 32 - n1 - n2 - q4
        assert o4 >= 0 and q3 >= 0 and n2 <= 16 and n1 <= 16
        order = list(range(32))
        X2 = order[:n2]; X1 = order[32-n1:]
        P1 = order[n2:n2+c.p1]; XO3 = order[n2+c.p1:n2+c.p1+o3]; XO4 = order[n2+c.p1+o3:32-n1]
        XQ3 = order[n2:n2+q3]; XQ4 = order[n2+q3:32-n1]
        rn = (rho+1) % 3; rnn = (rho+2) % 3
        k = S['k']
        a.label(f"L_top{rho}")
        self.stamp(0)
        a(f"s_lshr_b32 {S['t1']}, {k}, 1"); a(f"s_and_b32 {S['t1']}, {S['t1']}, 1"); a(f"s_lshl_b32 {S['t1']}, {S['t1']}, 13")
        a(f"s_add_u32 {S['Qy']}, {S['t1']}, {QB + rho*16384}"); a(f"s_xor_b32 {S['t1']}, {S['t1']}, 8192"); a(f"s_add_u32 {S['Qo']}, {S['t1']}, {QB + rho*16384}")
        a(f"s_mov_b32 {S['cnt']}, 0")
        a.label(f"L_g3p_{rho}")
        self.g3_issue(a)
        a("s_waitcnt vmcnt(0)")
        self.g3_check(a)
        a(f"s_cbranch_vccz L_g3px_{rho}")
        a(f"s_add_u32 {S['cnt']}, {S['cnt']}, 1"); a(f"s_cmp_lt_u32 {S['cnt']}, {c.limit}")
        a(f"s_cbranch_scc1 L_g3p_{rho}")
        a.label(f"L_g3px_{rho}")
        if c.diag: a(f"v_writelane_b32 {P['vT']}, {S['cnt']}, 13")
        self.stamp(1)
        a(f"ds_write_b128 {P['aQSw']}, v[112:115]")
        a(f"ds_write_b128 {P['aQSw']}, v[116:119] offset:1024")
        for i in X1: stream_load(a, Uy, i)
        k = S['k']
        a(f"s_add_u32 {S['t0']}, {k}, 1")
        a(f"s_lshr_b32 {S['t1']}, {S['t0']}, 1"); a(f"s_lshl_b32 {S['off0']}, {S['t1']}, 24"); a(f"s_add_u32 {S['off1']}, {S['off0']}, 8192")
        a(f"s_cmp_lt_u32 {S['t0']}, 16"); a(f"s_cselect_b32 {S['t2']}, 0x08000000, 0")
        a(f"s_mov_b32 s{sK+2}, {S['t2']}"); a(f"s_mov_b32 s{sV+2}, {S['t2']}")
        a(f"s_cselect_b32 {S['off0']}, {S['off0']}, 0"); a(f"s_cselect_b32 {S['off1']}, {S['off1']}, 0")
        a(f"s_bitcmp1_b32 {S['t0']}, 0")
        a(f"s_cselect_b32 s{sK}, s28, s18"); a(f"s_cselect_b32 s{sK+1}, s29, s19")
        a(f"s_cselect_b32 s{sV}, s30, s20"); a(f"s_cselect_b32 s{sV+1}, s31, s21")
        a(f"s_mov_b32 {S['Lam']}, {LAMB + rho*4096}")
        a(f"s_mul_i32 {S['t1']}, {k}, 28672"); a(f"s_add_u32 {S['Y']}, {S['t1']}, {YB}")
        a(f"s_mov_b32 {S['Pq']}, {PB + rho*PSZ}"); a(f"s_mov_b32 {S['P4']}, {PB + rho*PSZ + 4096}")
        a(f"s_lshr_b32 {S['t2']}, {S['wave']}, 1")
        a(f"s_lshl_b32 {S['t1']}, {S['t2']}, 15"); a(f"s_add_u32 {S['Pn']}, {S['t1']}, {PB + rn*PSZ}")
        a(f"s_lshl_b32 {S['t1']}, {S['t2']}, 8"); a(f"s_add_u32 {S['Ln']}, {S['t1']}, {LAMB + rn*4096}")
        a(f"s_lshr_b32 {S['ypos']}, {k}, 1"); a(f"s_and_b32 {S['ypos']}, {S['ypos']}, 1")
        a(f"s_xor_b32 {S['t3']}, {S['ypos']}, {S['t2']}"); a(f"s_xor_b32 {S['t3']}, {S['t3']}, 1")
        a(f"s_lshl_b32 {S['t1']}, {S['t3']}, 15"); a(f"s_add_u32 {S['Pw']}, {S['Pq']}, {S['t1']}")
        a(f"s_lshl_b32 {S['t1']}, {S['t3']}, 8"); a(f"s_add_u32 {S['Lw']}, {S['Lam']}, {S['t1']}")
        a(f"s_and_b32 {S['odd']}, {k}, 1")
        a(f"s_xor_b32 {S['t1']}, {S['ypos']}, 1"); a(f"s_mul_i32 {S['old896']}, {S['t1']}, 896")
        a(f"s_lshr_b32 {S['t1']}, {k}, 1"); a(f"s_add_u32 {S['t3']}, {S['t1']}, 1"); a(f"s_min_u32 {S['t3']}, {S['t3']}, 7")
        a(f"s_mul_i32 {S['bn']}, {S['t3']}, 896"); a(f"s_add_u32 {S['bn']}, {S['bn']}, {L_X0}")
        a(f"s_sub_u32 {S['ob']}, {S['t1']}, 1"); a(f"s_mul_i32 {S['ob']}, {S['ob']}, 896")
        a(f"s_xor_b32 {S['t1']}, {k}, {S['pi']}"); a(f"s_and_b32 {S['isq']}, {S['t1']}, 1")
        a(f"s_lshl_b32 {S['t1']}, {k}, 11"); a(f"s_add_u32 {S['XSw']}, {S['t1']}, {XSB + 2048}")
        self.stamp(2)
        a("v_mov_b32 v120, -1"); a("v_mov_b32 v121, -1")
        self.gstore(a, [f"buffer_store_dwordx2 v[120:121], {P['vPw']}, {srd(sWS)}, {S['Pn']} offen",
                        "s_mov_b64 exec, 1",
                        f"buffer_store_dword v120, {P['vLw']}, {srd(sWS)}, {S['Ln']} offen",
                        "s_mov_b64 exec, -1"], 'pp')
        for kk in range(8):
            a(f"ds_read_b128 {vr(32+4*kk,4)}, {P['aQr']} offset:{kk*64}")
        SCo, SCy = 64, 72
        for kk in range(8):
            a(f"s_waitcnt lgkmcnt({7 if kk else 7})" if kk == 0 else "s_waitcnt lgkmcnt(7)")
            for t in range(2):
                cc = '0' if kk == 0 else vr(SCo+4*t,4)
                a(f"v_mfma_f32_16x16x32_bf16 {vr(SCo+4*t,4)}, {kreg(Uo,t,kk)}, {vr(32+4*kk,4)}, {cc}")
            a(f"ds_read_b128 {vr(32+4*kk,4)}, {P['aQr']} offset:{1024+kk*64}")
        for i in X2: stream_load(a, Uo, i)
        self.stamp(4)
        for kk in range(8):
            a(f"s_waitcnt lgkmcnt({7-kk})")
            for t in range(2):
                cc = '0' if kk == 0 else vr(SCy+4*t,4)
                a(f"v_mfma_f32_16x16x32_bf16 {vr(SCy+4*t,4)}, {kreg(Uy,t,kk)}, {vr(32+4*kk,4)}, {cc}")
        MX = {0: 108, 1: 110}; LS = {0: 109, 1: 111}
        a(f"v_mov_b32 v127, {hex(f2u(CEXP))}")
        for role, SC in ((0, SCo), (1, SCy)):
            m = MX[role]; L = LS[role]
            a(f"v_max3_f32 v{m}, v{SC}, v{SC+1}, v{SC+2}")
            a(f"v_max3_f32 v88, v{SC+3}, v{SC+4}, v{SC+5}")
            a(f"v_max3_f32 v{m}, v{m}, v{SC+6}, v{SC+7}")
            a(f"v_max_f32 v{m}, v{m}, v88")
            self.xrow_reduce(a, m, 88, 'v_max_f32')
            a(f"v_mul_f32 v{m}, v{m}, v127")
            for i in range(8):
                a(f"v_fma_f32 v{SC+i}, v{SC+i}, v127, -v{m}")
            for i in range(8):
                a(f"v_exp_f32 v{SC+i}, v{SC+i}")
            a(f"v_add_f32 v{L}, v{SC}, v{SC+1}")
            a(f"v_add_f32 v88, v{SC+2}, v{SC+3}")
            a(f"v_add_f32 v89, v{SC+4}, v{SC+5}")
            a(f"v_add_f32 v90, v{SC+6}, v{SC+7}")
            a(f"v_add_f32 v{L}, v{L}, v88"); a(f"v_add_f32 v89, v89, v90"); a(f"v_add_f32 v{L}, v{L}, v89")
            self.xrow_reduce(a, L, 88, 'v_add_f32')
        self.stamp(5)
        OA = {0: 92, 1: 100}
        for role, SC, U in ((0, SCo, Uo), (1, SCy, Uy)):
            for t in range(2):
                for i in range(4):
                    pf = 80 + 4*((t*4+i) % 2)
                    a(f"v_cvt_pk_bf16_f32 v88, v{SC+4*t+i}, v{SC+4*t+i}")
                    for rr in range(4):
                        a(f"v_and_b32 v{pf+rr}, v88, {MASK[rr]}")
                    if role == 1:
                        e = (t*4+i)*2+1
                        if 16+e >= 32-n1:
                            j = 16+e-(32-n1)
                            a(f"s_waitcnt vmcnt({n1-1-j+2+n2})")
                    for hf in range(2):
                        cc = '0' if (t == 0 and i == 0) else vr(OA[role]+4*hf,4)
                        a(f"v_mfma_f32_16x16x32_bf16 {vr(OA[role]+4*hf,4)}, {vr(pf,4)}, {vreg(U,t,i,hf)}, {cc}")
        a("s_mov_b64 exec, 0x101")
        a(f"ds_write_b64 {P['aSTw']}, v[108:109]")
        a(f"ds_write_b64 {P['aSTw']}, v[110:111] offset:64")
        a("s_mov_b64 exec, -1")
        for role in range(2):
            for hf in range(2):
                a(f"ds_write_b128 {P['aOCw']}, {vr(OA[role]+4*hf,4)} offset:{role*2048+hf*512}")
        a("s_waitcnt lgkmcnt(0)")
        self.stamp(6)
        a("s_barrier")
        a(f"ds_read_b128 v[48:51], {P['aSTr']}")
        a(f"ds_read_b128 v[52:55], {P['aSTr']} offset:16")
        for sw in range(4):
            a(f"ds_read_b128 {vr(32+4*sw,4)}, {P['aOCr']} offset:{sw*4096}")
        a("s_waitcnt lgkmcnt(4)")
        a("v_max3_f32 v56, v48, v50, v52"); a("v_max_f32 v56, v56, v54")
        for sw in range(4):
            a(f"v_sub_f32 v{48+2*sw}, v{48+2*sw}, v56")
        for sw in range(4):
            a(f"v_exp_f32 v{48+2*sw}, v{48+2*sw}")
        a("v_mul_f32 v57, v48, v49"); a("v_fmac_f32 v57, v50, v51"); a("v_fmac_f32 v57, v52, v53"); a("v_fmac_f32 v57, v54, v55")
        a("v_rcp_f32 v58, v57"); a("v_log_f32 v59, v57")
        for sw in range(4):
            a(f"v_mul_f32 v{48+2*sw}, v{48+2*sw}, v58")
        a("v_add_f32 v59, v59, v56"); a("v_min_u32 v59, -2, v59")
        a("s_waitcnt lgkmcnt(0)")
        for i in range(4):
            a(f"v_mul_f32 v{60+i}, v{32+i}, v48")
        for sw in range(1, 4):
            for i in range(4):
                a(f"v_fmac_f32 v{60+i}, v{32+4*sw+i}, v{48+2*sw}")
        a("v_cvt_pk_bf16_f32 v64, v60, v61"); a("v_cvt_pk_bf16_f32 v65, v62, v63")
        a("v_min_u32 v64, -2, v64"); a("v_min_u32 v65, -2, v65")
        L = [f"buffer_store_dwordx2 v[64:65], {P['vPw']}, {srd(sWS)}, {S['Pw']} offen",
             "s_mov_b64 exec, 1",
             f"buffer_store_dword v59, {P['vLw']}, {srd(sWS)}, {S['Lw']} offen",
             "s_mov_b64 exec, -1"]
        self.gstore(a, L, 'p')
        self.stamp(7)
        a(f"s_cmp_lg_u32 {S['isq']}, 0")
        a(f"s_cbranch_scc1 L_q_{rho}")
        for i in P1: stream_load(a, Uo, i)
        a(f"s_mov_b32 {S['cnt']}, 0")
        a.label(f"L_g1p_{rho}")
        self.g1_issue(a, P_=False)
        a("s_waitcnt vmcnt(0)")
        a("v_max3_u32 v79, v64, v65, v66"); a("v_max3_u32 v78, v67, v68, v69"); a("v_max3_u32 v79, v79, v70, v71"); a("v_max_u32 v79, v79, v78")
        a("v_cmp_eq_u32 vcc, -1, v79")
        a(f"s_cbranch_vccz L_g1px_{rho}")
        a(f"s_add_u32 {S['cnt']}, {S['cnt']}, 1"); a(f"s_cmp_lt_u32 {S['cnt']}, {c.limit}")
        a(f"s_cbranch_scc1 L_g1p_{rho}")
        a.label(f"L_g1px_{rho}")
        if c.diag: a(f"v_writelane_b32 {P['vT']}, {S['cnt']}, 14")
        self.g1_issue(a, L_=False)
        for i in XO3: stream_load(a, Uo, i)
        for kk in range(8):
            a(f"ds_read_b64_tr_b16 {vr(96+4*kk,2)}, {P['aWOr']} offset:{kk*1024}")
            a(f"ds_read_b64_tr_b16 {vr(98+4*kk,2)}, {P['aWOr']} offset:{kk*1024+128}")
            if kk == 5: a("s_waitcnt lgkmcnt(6)")
        a.label(f"L_g1c_{rho}")
        a("v_max3_f32 v72, v64, v65, v66"); a("v_max3_f32 v73, v67, v68, v69"); a("v_max3_f32 v72, v72, v70, v71"); a("v_max_f32 v72, v72, v73")
        self.xrow_reduce(a, 72, 73, 'v_max_f32')
        for i in range(8): a(f"v_sub_f32 v{64+i}, v{64+i}, v72")
        for i in range(8): a(f"v_exp_f32 v{64+i}, v{64+i}")
        a("v_add_f32 v74, v64, v65"); a("v_add_f32 v75, v66, v67"); a("v_add_f32 v76, v68, v69"); a("v_add_f32 v77, v70, v71")
        a("v_add_f32 v74, v74, v75"); a("v_add_f32 v76, v76, v77"); a("v_add_f32 v74, v74, v76")
        self.xrow_reduce(a, 74, 73, 'v_add_f32')
        a("v_rcp_f32 v74, v74")
        a(f"s_waitcnt vmcnt({o3})")
        self.stamp(8)
        for ld in range(8):
            pf = 80 + 4*(ld % 2)
            a(f"v_cvt_pk_bf16_f32 v88, v{64+ld}, v{64+ld}")
            for rr in range(4):
                a(f"v_and_b32 v{pf+rr}, v88, {MASK[rr]}")
            cc = '0' if ld == 0 else 'v[92:95]'
            a(f"v_mfma_f32_16x16x32_bf16 v[92:95], {vr(pf,4)}, {vr(32+4*ld,4)}, {cc}")
        for i in range(4): a(f"v_mul_f32 v{92+i}, v{92+i}, v74")
        a("v_add_f32 v76, v92, v93"); a("v_add_f32 v77, v94, v95"); a("v_add_f32 v76, v76, v77")
        a("v_cmp_u_f32 vcc, v76, v76")
        a(f"s_cbranch_vccnz L_g1r_{rho}")
        a.label(f"L_g1ok_{rho}")
        a(f"s_mov_b32 {S['acc']}, 0")
        tl.label(f"L_g1r_{rho}")
        tl(f"s_cmp_lg_u32 {S['acc']}, 0"); tl(f"s_cbranch_scc1 L_g1ok_{rho}")
        tl(f"s_mov_b32 {S['cnt']}, 0")
        tl.label(f"L_g1rl_{rho}")
        if c.diag: tl("s_add_u32 s99, s99, 1")
        self.g1_issue(tl); tl("s_waitcnt vmcnt(0)")
        self.exact_check(tl, range(32, 72))
        tl(f"s_mov_b32 {S['acc']}, 1")
        tl(f"s_cbranch_vccz L_g1c_{rho}")
        tl(f"s_add_u32 {S['cnt']}, {S['cnt']}, 1"); tl(f"s_cmp_lt_u32 {S['cnt']}, {c.limit}")
        tl(f"s_cbranch_scc1 L_g1rl_{rho}")
        tl(f"s_branch L_g1c_{rho}")
        a("v_cvt_pk_bf16_f32 v76, v92, v93"); a("v_cvt_pk_bf16_f32 v77, v94, v95")
        a(f"ds_write_b64 {P['aO2w']}, v[76:77]")
        a("s_waitcnt lgkmcnt(0)")
        self.stamp(9)
        a("s_barrier")
        for kk in range(8):
            a(f"ds_read_b128 {vr(32+4*kk,4)}, {P['aO2r']} offset:{kk*64}")
        a(f"v_mov_b32 v78, {S['tag0']}"); a(f"s_lshl_b32 {S['t0']}, {S['h']}, 2"); a(f"v_mov_b32 v79, {S['t0']}")
        for kk in range(8):
            a(f"s_waitcnt lgkmcnt({7-kk})")
            cc = '0' if kk == 0 else 'v[92:95]'
            a(f"v_mfma_f32_16x16x32_bf16 v[92:95], {vr(96+4*kk,4)}, {vr(32+4*kk,4)}, {cc}")
        a("s_mov_b32 exec_lo, 0x00030003")
        a(f"s_cmp_eq_u32 {S['wave']}, 3"); a(f"s_cselect_b32 exec_hi, 0, 0x00030003")
        a("v_cvt_pk_bf16_f32 v76, v92, v93"); a("v_cvt_pk_bf16_f32 v77, v94, v95")
        a("v_min_u32 v76, -2, v76"); a("v_min_u32 v77, -2, v77")
        a(f"buffer_store_dwordx2 v[76:77], {P['vYw']}, {srd(sWS)}, {S['Y']} offen sc1")
        a(f"s_cmp_eq_u32 {S['wave']}, {c.fwave}")
        a(f"s_cbranch_scc0 L_nof2_{rho}")
        a("s_mov_b64 exec, 1")
        a(f"buffer_store_dword v78, v79, {srd(sWS)}, {S['f2o']} offen sc1")
        a.label(f"L_nof2_{rho}")
        a("s_mov_b64 exec, -1")
        self.stamp(10)
        for i in XO4: stream_load(a, Uo, i)
        self.stamp(11)
        a(f"s_branch L_e_{rho}")
        a.label(f"L_q_{rho}")
        for i in XQ3: stream_load(a, Uo, i)
        self.stamp(8)
        a(f"s_cmp_lg_u32 {S['wave']}, 2")
        a(f"s_cbranch_scc1 L_nop2_{rho}")
        self.poll(a, f"2_{rho}", S['f2o'], 15)
        a.label(f"L_nop2_{rho}")
        a("s_barrier")
        self.stamp(9)
        self.g2_issue(a, first=True)
        for i in XQ4: stream_load(a, Uo, i)
        a("v_mov_b32 v88, 0x3f803f80" if False else "v_mov_b32 v94, 0x3f803f80")
        for rr in range(4): a(f"v_and_b32 v{80+rr}, v94, {MASK[rr]}")
        a(f"v_subrev_u32 v76, {L_X}, {P['aXu']}"); a(f"v_subrev_u32 v76, {S['old896']}, v76")
        a(f"v_subrev_u32 v77, {L_X}, {P['aXu2']}"); a(f"v_subrev_u32 v77, {S['old896']}, v77")
        a("v_min_u32 v78, 0x378, v76"); a(f"v_add_u32 v78, {S['bn']}, v78")
        a("v_min_u32 v79, 0x378, v77"); a(f"v_add_u32 v79, {S['bn']}, v79")
        a("ds_read_b64 v[72:73], v78"); a("ds_read_b64 v[74:75], v79")
        a(f"s_cmp_gt_u32 {S['wave']}, 1")
        a(f"s_cbranch_scc1 L_nowq_{rho}")
        self.wq_preload()
        a.label(f"L_nowq_{rho}")
        a(f"s_waitcnt vmcnt({q4})")
        a.label(f"L_g2c_{rho}")
        self.stamp(10)
        for s in range(2):
            for rr in range(4):
                cc = '0' if rr == 0 else vr(64+4*s,4)
                a(f"v_mfma_f32_16x16x32_bf16 {vr(64+4*s,4)}, v[80:83], {vr(32+16*s+4*rr,4)}, {cc}")
        a("v_and_b32 v87, 0xffff0000, v85"); a("v_lshlrev_b32 v86, 16, v85"); a("v_and_b32 v85, 0xffff0000, v84"); a("v_lshlrev_b32 v84, 16, v84")
        a("v_and_b32 v91, 0xffff0000, v89"); a("v_lshlrev_b32 v90, 16, v89"); a("v_and_b32 v89, 0xffff0000, v88"); a("v_lshlrev_b32 v88, 16, v88")
        for i in range(8): a(f"v_add_f32 v{64+i}, v{64+i}, v{84+i}")
        a("v_add_f32 v92, v64, v65"); a("v_add_f32 v93, v66, v67"); a("v_add_f32 v94, v68, v69"); a("v_add_f32 v95, v70, v71")
        a("v_add_f32 v92, v92, v93"); a("v_add_f32 v94, v94, v95"); a("v_add_f32 v92, v92, v94")
        a("v_cmp_u_f32 vcc, v92, v92")
        a(f"s_cbranch_vccnz L_g2r_{rho}")
        a.label(f"L_g2ok_{rho}")
        a(f"s_mov_b32 {S['acc']}, 0")
        tl.label(f"L_g2r_{rho}")
        tl(f"s_cmp_lg_u32 {S['acc']}, 0"); tl(f"s_cbranch_scc1 L_g2ok_{rho}")
        tl(f"s_mov_b32 {S['cnt']}, 0")
        tl.label(f"L_g2rl_{rho}")
        if c.diag: tl("s_add_u32 s100, s100, 1")
        self.g2_issue(tl); tl("s_waitcnt vmcnt(0)")
        self.exact_check(tl, list(range(32, 64)) + [84, 85, 88, 89])
        tl(f"s_mov_b32 {S['acc']}, 1")
        tl(f"s_cbranch_vccz L_g2c_{rho}")
        tl(f"s_add_u32 {S['cnt']}, {S['cnt']}, 1"); tl(f"s_cmp_lt_u32 {S['cnt']}, {c.limit}")
        tl(f"s_cbranch_scc1 L_g2rl_{rho}")
        tl(f"s_branch L_g2c_{rho}")
        a("v_cvt_pk_bf16_f32 v64, v64, v65"); a("v_cvt_pk_bf16_f32 v65, v66, v67")
        a("v_cvt_pk_bf16_f32 v66, v68, v69"); a("v_cvt_pk_bf16_f32 v67, v70, v71")
        a("s_waitcnt lgkmcnt(0)")
        a(f"s_cmp_eq_u32 {S['odd']}, 0")
        a(f"s_cbranch_scc1 L_xw_{rho}")
        a(f"s_movk_i32 {S['t0']}, 896")
        a(f"v_cmp_gt_u32 vcc, {S['t0']}, v76")
        a(f"s_cmp_eq_u32 {S['wg']}, 0"); a(f"s_cselect_b32 {S['t1']}, 1, 0")
        a(f"s_cmp_ge_u32 {k}, 2"); a(f"s_cselect_b32 {S['t1']}, {S['t1']}, 0")
        a(f"s_cmp_eq_u32 {S['t1']}, 0")
        a(f"s_cbranch_scc1 L_noout_{rho}")
        a("s_and_b64 s[92:93], vcc, exec")
        a("s_mov_b32 s93, 0")
        a("s_mov_b64 exec, s[92:93]")
        a(f"buffer_store_dwordx2 v[64:65], v76, {srd(sOUT)}, {S['ob']} offen")
        a("s_mov_b64 exec, -1")
        a(f"s_movk_i32 {S['t0']}, 896")
        a(f"v_cmp_gt_u32 s[92:93], {S['t0']}, v77")
        a("s_mov_b32 s93, 0")
        a("s_mov_b64 exec, s[92:93]")
        a(f"buffer_store_dwordx2 v[66:67], v77, {srd(sOUT)}, {S['ob']} offen")
        a("s_mov_b64 exec, -1")
        a.label(f"L_noout_{rho}")
        a(f"s_movk_i32 {S['t0']}, 896")
        a(f"v_cmp_gt_u32 vcc, {S['t0']}, v76")
        a("v_cndmask_b32 v64, v64, v72, vcc"); a("v_cndmask_b32 v65, v65, v73, vcc")
        a(f"v_cmp_gt_u32 vcc, {S['t0']}, v77")
        a("v_cndmask_b32 v66, v66, v74, vcc"); a("v_cndmask_b32 v67, v67, v75, vcc")
        a.label(f"L_xw_{rho}")
        a(f"ds_write_b64 {P['aXu']}, v[64:65]")
        a(f"ds_write_b64 {P['aXu2']}, v[66:67]")
        a(f"s_cmp_lg_u32 {S['h']}, 0"); a(f"s_cbranch_scc1 L_noxs_{rho}")
        a(f"s_cmp_lg_u32 {S['rh']}, 0"); a(f"s_cbranch_scc1 L_noxs_{rho}")
        for i in range(4): a(f"v_min_u32 v{68+i}, -2, v{64+i}")
        a(f"v_subrev_u32 v92, {L_X}, {P['aXu']}"); a(f"v_subrev_u32 v93, {L_X}, {P['aXu2']}")
        a("s_mov_b32 exec_hi, 0")
        a(f"buffer_store_dwordx2 v[68:69], v92, {srd(sWS)}, {S['XSw']} offen sc1")
        a(f"buffer_store_dwordx2 v[70:71], v93, {srd(sWS)}, {S['XSw']} offen sc1")
        a("s_mov_b32 exec_hi, -1")
        a.label(f"L_noxs_{rho}")
        self.stamp(11)
        a(f"s_cmp_eq_u32 {k}, {c.nrounds-1}")
        a(f"s_cbranch_scc1 L_e_{rho}")
        a.label(f"L_qp_{rho}")
        a(f"s_mov_b32 {S['Qr']}, {QB + rn*16384}"); a(f"s_mov_b32 {S['Qn']}, {QB + rnn*16384}")
        a("s_waitcnt lgkmcnt(0)")
        a("s_barrier")
        a(f"s_cmp_gt_u32 {S['wave']}, 1")
        a(f"s_cbranch_scc1 L_e_{rho}")
        self.qproj(rho)
        a.label(f"L_e_{rho}")
        self.stamp(12)
        if c.diag:
            a(f"s_cmp_lt_i32 {k}, 0"); a(f"s_cbranch_scc1 L_nod_{rho}")
            for i in range(3):
                a(f"v_writelane_b32 {P['vT']}, s{98+i}, {16+i}"); a(f"s_mov_b32 s{98+i}, 0")
            a(f"s_mul_i32 {S['t0']}, {S['wg']}, {4*18*256}"); a(f"s_mul_i32 {S['t1']}, {S['wave']}, {18*256}")
            a(f"s_add_u32 {S['t0']}, {S['t0']}, {S['t1']}"); a(f"s_lshl_b32 {S['t1']}, {k}, 8"); a(f"s_add_u32 {S['t0']}, {S['t0']}, {S['t1']}")
            a(f"s_add_u32 {S['t0']}, {S['t0']}, {DIAGB}")
            a(f"v_subrev_u32 v92, {L_QS}, {P['aQSw']}"); a("v_and_b32 v92, 0x3ff, v92"); a("v_lshrrev_b32 v92, 2, v92")
            a(f"buffer_store_dword {P['vT']}, v92, {srd(sWS)}, {S['t0']} offen")
            a.label(f"L_nod_{rho}")
        a(f"s_add_u32 {k}, {k}, 1")
        a(f"s_cmp_eq_u32 {k}, 0")
        a(f"s_cbranch_scc1 L_top0")
        a(f"s_add_u32 {S['tag0']}, {S['tag0']}, 0x01010101"); a(f"s_mov_b32 {S['tag1']}, {S['tag0']}")
        a(f"s_mov_b32 s{sTMP}, s40"); a(f"s_mov_b32 s{sTMP+1}, s41"); a(f"s_mov_b32 s{sTMP+2}, {WS_RECORDS}")
        a(f"s_lshl_b32 {S['t1']}, {k}, 11"); a(f"s_add_u32 {S['XSo']}, {S['t1']}, {XSB}")
        a(f"s_cmp_ge_u32 {k}, {c.nrounds}")
        a("s_cbranch_scc1 L_end")
        if rho == 2: a("s_branch L_top0")

    def build(self):
        a = self.a
        self.init()
        for rho in range(3): self.round(rho)
        a.label("L_end")
        a("s_endpgm")
        lines = a.lines + self.tail.lines
        return lines
    def _find(self, lab):
        return self.a.lines.index(lab + ':')

def header(cfg):
    ref = open('cdna_kernels/' + NAME + '.s.ref').read().split('\n')
    hdr = [l for l in ref if l.startswith('; ') and ('offset' in l or 'Kernarg' in l)]
    o = hdr[:]
    o.append(f"; @launch grid=(256,1,1) block=(256,1,1) lds={LDS_BYTES}")
    o.append('.amdgcn_target "amdgcn-amd-amdhsa--gfx950"')
    o.append('.text'); o.append(f'.globl {NAME}_kernel'); o.append('.p2align 8'); o.append(f'.type {NAME}_kernel,@function')
    o.append(f'{NAME}_kernel:')
    return o
def footer():
    return ['.section .rodata,"a"', '.p2align 6', f'.amdhsa_kernel {NAME}_kernel',
            '  .amdhsa_next_free_vgpr 512', '  .amdhsa_next_free_sgpr 102', '  .amdhsa_accum_offset 256',
            '  .amdhsa_group_segment_fixed_size 0', '  .amdhsa_kernarg_size 104', '  .amdhsa_user_sgpr_count 2',
            '  .amdhsa_user_sgpr_kernarg_segment_ptr 1', '  .amdhsa_system_sgpr_workgroup_id_x 1', '.end_amdhsa_kernel']

def generate(cfg):
    g = Gen(cfg)
    body = finalize(g.build())
    return '\n'.join(header(cfg) + body + footer()) + '\n'

if __name__ == '__main__':
    cfg = Cfg()
    out = 'cdna_kernels/' + NAME + '.s'
    args = sys.argv[1:]
    for x in args:
        if '=' in x:
            kk, vv = x.split('=')
            if kk == 'out': out = vv
            elif kk == 'diag': cfg.diag = bool(int(vv))
            else: setattr(cfg, kk, int(vv))
    open(out, 'w').write(generate(cfg))
    print('wrote', out)
```

```python
import sys; sys.path.insert(0,'exp')
from drv import *
import numpy as np
o=[]; A=o.append
name='e9_kernel'
A('.amdgcn_target "amdgcn-amd-amdhsa--gfx950"')
A('.text'); A(f'.globl {name}'); A('.p2align 8'); A(f'.type {name},@function'); A(f'{name}:')
A('s_cmp_ge_u32 s2, 1'); A(f's_cbranch_scc1 {name}_done')
A('s_load_dwordx4 s[4:7], s[0:1], 0')
A('v_lshlrev_b32 v1, 6, v0')
A('v_lshlrev_b32 v2, 4, v0')
A('s_waitcnt lgkmcnt(0)')
A('s_mov_b32 s12, s4'); A('s_mov_b32 s13, s5'); A('s_mov_b32 s14, 4096'); A('s_mov_b32 s15, 0x20000')
A('s_mov_b32 s16, s6'); A('s_mov_b32 s17, s7'); A('s_mov_b32 s18, 8192'); A('s_mov_b32 s19, 0x20000')
A('buffer_load_dwordx4 v[4:7], v1, s[12:15], 0 offen')
A('buffer_load_dwordx4 v[8:11], v1, s[12:15], 0 offen offset:16')
A('buffer_load_dwordx4 v[12:15], v1, s[12:15], 0 offen offset:32')
A('buffer_load_dwordx4 v[16:19], v1, s[12:15], 0 offen offset:48')
A('s_waitcnt vmcnt(0)')
for base,abid in ((20,0),(24,1)):
    for i in range(4): A(f'v_mov_b32 v{base+i}, 0')
    A('s_nop 4')
    A(f'v_smfmac_f32_16x16x64_bf16 v[{base}:{base+3}], v[4:7], v[8:15], v16' + (f' abid:{abid}' if abid else ''))
A('s_nop 7'); A('s_nop 7'); A('s_nop 7')
A('buffer_store_dwordx4 v[20:23], v2, s[16:19], 0 offen')
A('buffer_store_dwordx4 v[24:27], v2, s[16:19], 0 offen offset:1024')
A('s_waitcnt vmcnt(0)')
def timed(slot, body):
    A('s_nop 7'); A('s_nop 7'); A('s_nop 7'); A('s_nop 7')
    A('s_memtime s[20:21]'); A('s_waitcnt lgkmcnt(0)')
    for l in body: A(l)
    A('s_nop 0')
    A('s_memtime s[22:23]'); A('s_waitcnt lgkmcnt(0)')
    A('s_sub_u32 s24, s22, s20'); A('v_mov_b32 v30, s24'); A(f'v_mov_b32 v31, {2048+slot*4}')
    A('buffer_store_dword v30, v31, s[16:19], 0 offen'); A('s_waitcnt vmcnt(0)')
N=64
timed(0, [f'v_mfma_f32_16x16x32_bf16 v[{32+4*(i%8)}:{35+4*(i%8)}], v[4:7], v[8:11], v[{32+4*(i%8)}:{35+4*(i%8)}]' for i in range(N)])
timed(1, [f'v_smfmac_f32_16x16x64_bf16 v[{32+4*(i%8)}:{35+4*(i%8)}], v[4:7], v[8:15], v16' for i in range(N)])
timed(2, [f'v_smfmac_f32_16x16x64_bf16 v[{32+4*(i%2)}:{35+4*(i%2)}], v[4:7], v[8:15], v16' for i in range(N)])
timed(3, [f'v_smfmac_f32_16x16x64_bf16 v[32:35], v[4:7], v[8:15], v16' for i in range(N)])
b=[]
for i in range(N):
    b.append(f'v_smfmac_f32_16x16x64_bf16 v[{32+4*(i%2)}:{35+4*(i%2)}], v[4:7], v[8:15], v16'); b += [f'v_and_b32 v{70+j}, v1, v2' for j in range(2)]
timed(4, b)
b=[]
for i in range(N):
    b.append(f'v_smfmac_f32_16x16x64_bf16 v[{32+4*(i%2)}:{35+4*(i%2)}], v[4:7], v[8:15], v16'); b += [f'v_and_b32 v{70+j}, v1, v2' for j in range(3)]
timed(5, b)
b=[]
for i in range(N):
    b.append(f'v_mfma_f32_16x16x32_bf16 v[{32+4*(i%2)}:{35+4*(i%2)}], v[4:7], v[8:11], v[{32+4*(i%2)}:{35+4*(i%2)}]'); b += [f'v_and_b32 v{70+j}, v1, v2' for j in range(2)]
timed(6, b)
timed(7, [])
A(f'{name}_done:'); A('s_endpgm')
A(f'.size {name}, .-{name}')
A('.section .rodata,"a"'); A('.p2align 6')
A(f'.amdhsa_kernel {name}')
for l in ['.amdhsa_user_sgpr_count 2','.amdhsa_user_sgpr_kernarg_segment_ptr 1','.amdhsa_system_sgpr_workgroup_id_x 1','.amdhsa_system_vgpr_workitem_id 0','.amdhsa_next_free_vgpr 128','.amdhsa_next_free_sgpr 64','.amdhsa_accum_offset 128','.amdhsa_kernarg_size 16']: A(l)
A('.end_amdhsa_kernel')
open('e9.s','w').write('\n'.join(o)+'\n')
co=assemble('e9.s',[(name,64,128,64)],2)
if len(sys.argv)>1 and sys.argv[1]=='asm': raise SystemExit
k=load(co,name,check=False)
def bf(x):
    u=np.asarray(x,dtype=np.float32).view(np.uint32); return ((u+0x7fff+((u>>16)&1))>>16).astype(np.uint16)
def fb(u): return (u.astype(np.uint32)<<16).view(np.float32)

pk=lambda x: sum((x[:,c].astype(np.uint32)<<(2*c)) for c in range(8)).astype(np.uint32)
def run(Aa,Bb,idx,idx2):
    inp=np.zeros((64,16),np.uint32)
    inp[:,0:4]=np.ascontiguousarray(Aa).view(np.uint32); inp[:,4:12]=np.ascontiguousarray(Bb).view(np.uint32); inp[:,12]=pk(idx)|(pk(idx2)<<16)
    bi=Buf.from_numpy(inp); bo=Buf(8192)
    launch(k,(1,1,1),(64,1,1),[bi.ptr,bo.ptr]); sync()
    out=bo.to_numpy(np.uint32,(2048,))
    return out[0:256].view(np.float32).reshape(64,4), out[256:512].view(np.float32).reshape(64,4)

rng=np.random.default_rng(0)
for trial in range(6):
    Aa=bf(rng.integers(-4,5,(64,8))); Bb=bf(rng.integers(-4,5,(64,16)))
    if trial<2:
        def r():
            x=np.zeros((64,8),int)
            for l in range(64):
                for p in range(4): x[l,2*p:2*p+2]=sorted(rng.choice(4,2,replace=False))
            return x
        idx=r(); idx2=r()
    elif trial<4: idx=rng.integers(0,4,(64,8)); idx2=rng.integers(0,4,(64,8))
    else:
        idx=np.tile(rng.integers(0,4,(64,1)),(1,8)); idx2=np.tile(rng.integers(0,4,(64,1)),(1,8))
    d=run(Aa,Bb,idx,idx2)
    for nm,ix,D in (('abid0',idx,d[0]),('abid1',idx2,d[1])):
        Af=fb(Aa); Bf=fb(Bb); E=np.zeros((64,4))
        for n in range(16):
            for m in range(16):
                s=0
                for g in range(4):
                    for c in range(8):
                        kk=16*g+4*(c>>1)+ix[g*16+m,c]
                        s+=Af[g*16+m,c]*Bf[((kk>>3)&3)*16+n,(kk>>5)*8+(kk&7)]
                E[(m>>2)*16+n,m&3]=s
        print(trial,nm,'mismatch',int((D!=E).sum()))
```
